```python
import torch

def _softmax(x, axis=-1):
    return torch.softmax(x, dim=axis)
def _gelu(x):
    return torch.nn.functional.gelu(x, approximate="tanh")
def _silu(x):
    return torch.nn.functional.silu(x)
def _sigmoid(x):
    return torch.sigmoid(x)
def _layernorm(x, axis=-1, eps=1e-5):
    m = x.mean(dim=axis, keepdim=True)
    v = x.var(dim=axis, keepdim=True, unbiased=False)
    return (x - m) / torch.sqrt(v + eps)
def _scatter_add(tgt, idx, src, axis=0):
    return tgt.clone().index_add_(axis, idx, src)
def _segment_sum(src, seg, n):
    out = torch.zeros((n,) + src.shape[1:], dtype=src.dtype)
    return out.index_add_(0, seg, src)
def _pad(x, pw):
    flat = tuple(v for pair in reversed(pw) for v in pair)
    return torch.nn.functional.pad(x, flat)

kernel_name = 'gated_mix__sliding_local_dilated__dense_activation_relu__prompt'

def setup_inputs():

    _w = (lambda a: (lambda t: t.to(torch.bfloat16) if t.is_floating_point() else t)(torch.as_tensor(a)))
    def _A_setup():
        B, S, D = 1, 2048, 1024
        return {
            "x": _w((lambda *s: torch.randn(*s, dtype=torch.bfloat16) * 0.05)(B, S, D)),
            "wqkv": _w((lambda *s: torch.randn(*s, dtype=torch.bfloat16) * 0.8)(D, 3 * D)),
            "wo": _w((lambda *s: torch.randn(*s, dtype=torch.bfloat16) * 0.05)(D, D)),
        }
    _A_in = _A_setup()

    def _B_setup():
        B, S, D, Dff = 1, 2048, 1024, 3584
        return {
            "x": _w((lambda *s: torch.randn(*s, dtype=torch.bfloat16) * 0.05)(B, S, D)),
            "w1": _w((lambda *s: torch.randn(*s, dtype=torch.bfloat16) * 0.2)(D, Dff)),
            "w2": _w((lambda *s: torch.randn(*s, dtype=torch.bfloat16) * 0.2)(Dff, D)),
        }
    _B_in = _B_setup()

    return {
        "A_x": _A_in["x"],
        "A_wqkv": _A_in["wqkv"],
        "A_wo": _A_in["wo"],
        "B_x": _B_in["x"],
        "B_w1": _B_in["w1"],
        "B_w2": _B_in["w2"],
        "gate_w": _w((lambda *s: torch.randn(*s, dtype=torch.bfloat16) * 0.05)(1024) * 16.0),
    }

def reference(A_x, A_wqkv, A_wo, B_x, B_w1, B_w2, gate_w):
    def _A_ref(x, wqkv, wo):
        B, S, D = x.shape
        H = 32; Dh = D // H
        W, dil = 8, 2
        qkv = (lambda x, *d: x.permute(*d))((x @ wqkv).reshape(B, S, 3, H, Dh), 2, 0, 3, 1, 4)
        q, k, v = qkv[0], qkv[1], qkv[2]
        scale = Dh ** -0.5
        pos = torch.arange(S)
        off = torch.arange(W) * dil
        idx = pos[:, None] - off[None, :]
        mask = idx >= 0
        idx_c = torch.where(mask, idx, 0).reshape(-1)
        kg = k[:, :, idx_c, :].reshape(B, H, S, W, Dh)
        vg = v[:, :, idx_c, :].reshape(B, H, S, W, Dh)
        logits = torch.einsum("bhsd,bhswd->bhsw", q, kg) * scale
        logits = torch.where(mask[None, None, :, :], logits, -1e9)
        attn = _softmax(logits, axis=-1)
        o = torch.einsum("bhsw,bhswd->bhsd", attn, vg)
        return (lambda x, *d: x.permute(*d))(o, 0, 2, 1, 3).reshape(B, S, D) @ wo

    def _B_ref(x, w1, w2):
        h = torch.einsum("bsd,df->bsf", x, w1)
        zero = torch.zeros_like(h)
        h = torch.maximum(h, zero)
        return torch.einsum("bsf,fd->bsd", h, w2)

    x = A_x
    g = _sigmoid((x * gate_w).sum(-1, keepdims=True))
    a = _A_ref(x, A_wqkv, A_wo)
    b = _B_ref(x, B_w1, B_w2)
    return g * a + (1 - g) * b
```

```python
import re
NAME = "gated_mix__sliding_local_dilated__dense_activation_relu__prompt"

HEADER = """; Kernarg layout for this problem (80 bytes, ptrs only, base s[0:1]):
"""

REG_RE = re.compile(r"\b([vas])(?:\[(\d+):(\d+)\]|(\d+))(?![\w\[])")
TRANS = ("v_exp_f32", "v_log_f32", "v_rcp_f32", "v_rsq_f32", "v_sqrt_f32", "v_sin_f32", "v_cos_f32", "v_rcp_iflag_f32")

def regs_of(op):
    out = set()
    op = op.strip()
    if op in ("vcc",): return {("s", 106), ("s", 107)}
    if op == "vcc_lo": return {("s", 106)}
    if op == "vcc_hi": return {("s", 107)}
    if op == "exec": return {("s", 126), ("s", 127)}
    if op == "m0": return {("s", 124)}
    for m in REG_RE.finditer(op):
        k = m.group(1)
        if m.group(2) is not None:
            for i in range(int(m.group(2)), int(m.group(3)) + 1): out.add((k, i))
        else:
            out.add((k, int(m.group(4))))
    return out

class Ins:
    def __init__(self, text):
        self.text = text
        t = text.split(";")[0].strip()
        self.is_label = t.endswith(":")
        parts = t.split(None, 1)
        self.op = parts[0] if parts else ""
        rest = parts[1] if len(parts) > 1 else ""
        ops = [o.strip() for o in rest.split(",")] if rest else []
        self.mods = ""
        if ops:
            sp = ops[-1].split(None, 1)
            if len(sp) > 1:
                ops[-1] = sp[0]; self.mods = sp[1]
        self.ops = ops
        op = self.op
        self.dst = set(); self.src = set(); self.srcC = set(); self.srcAB = set()
        self.kind = "other"
        self.passes = 0
        if self.is_label or not op: self.kind = "label"; return
        R = [regs_of(o) for o in ops]
        if op.startswith("v_mfma"):
            self.kind = "mfma"
            self.passes = 4 if "16x16x32" in op else 8
            self.dst = R[0]; self.srcAB = R[1] | R[2]; self.srcC = R[3]; self.src = self.srcAB | self.srcC
        elif op.startswith("v_"):
            self.kind = "valu"
            if op.startswith("v_permlane") and "swap" in op:
                self.dst = R[0] | R[1]; self.src = R[0] | R[1]
            elif op.startswith("v_cmp"):
                self.dst = R[0]; self.src = set().union(*R[1:])
            elif op.startswith(("v_add_co", "v_sub_co", "v_addc_co", "v_subb_co")):
                self.dst = R[0] | R[1]; self.src = set().union(*R[2:])
            else:
                self.dst = R[0]; self.src = set().union(*R[1:]) if len(R) > 1 else set()
                if op.startswith(("v_fmac", "v_dot2c", "v_writelane")): self.src |= R[0]
                if op.startswith("v_cndmask") and len(ops) == 3: self.src |= regs_of("vcc")
        elif op.startswith("ds_"):
            self.kind = "ds"
            if op.startswith(("ds_read", "ds_bpermute", "ds_permute", "ds_swizzle")):
                self.dst = R[0]; self.src = set().union(*R[1:])
            else:
                self.src = set().union(*R)
        elif op.startswith(("buffer_", "global_")):
            self.kind = "vmem"
            self.lds = bool(re.search(r"\blds\b", self.mods)) or "_lds_" in op
            if op.startswith(("buffer_load", "global_load")) and not self.lds:
                self.dst = R[0]; self.src = set().union(*R[1:])
            elif "atomic" in op and re.search(r"\bsc0\b", self.mods):
                self.dst = R[0]; self.src = set().union(*R)
            else:
                self.src = set().union(*R) if R else set()
            if self.lds: self.src |= regs_of("m0")
            self.wide_store = op.endswith(("store_dwordx4", "store_dwordx3"))
            if self.wide_store:
                self.sdata = R[0] if op.startswith("buffer_") else R[1]
        elif op.startswith("s_"):
            self.kind = "salu"
            if op in ("s_nop", "s_waitcnt", "s_barrier", "s_setprio", "s_endpgm", "s_sleep", "s_branch") or op.startswith(("s_cbranch", "s_cmp")):
                self.src = set().union(*R) if R else set()
            else:
                self.dst = R[0] if R else set(); self.src = set().union(*R[1:]) if len(R) > 1 else set()
                if "saveexec" in op: self.dst |= regs_of("exec")
        self.is_trans = op.replace("_e32", "").replace("_e64", "") in TRANS
        self.is_dpp = "_dpp" in op or "row_" in self.mods or "quad_perm" in self.mods
    def states(self):
        if self.kind == "label": return 0
        if self.op == "s_nop": return int(self.ops[0], 0) + 1
        return 1

def need(p, c):
    n = 0
    vp = {r for r in p.dst if r[0] in "va"}
    sp = {r for r in p.dst if r[0] == "s"}
    if p.kind == "valu":
        if c.kind == "mfma" and vp & c.src: n = max(n, 2)
        if c.kind == "valu":
            if p.is_trans and not c.is_trans and vp & c.src: n = max(n, 1)
            if c.op.startswith("v_permlane") and vp & c.src: n = max(n, 2)
            if c.is_dpp and vp & c.src: n = max(n, 2)
            if c.op.startswith(("v_readlane", "v_readfirstlane")) and vp & c.src: n = max(n, 1)
            if sp & c.src:
                n = max(n, 4 if c.op.startswith(("v_readlane", "v_writelane")) else 2)
            if ("op_sel" in p.mods or "sdwa" in p.op) and vp & (c.src | c.dst): n = max(n, 1)
        if p.op.startswith("v_dot"):
            if c.op == p.op and c.kind == "valu":
                R = [regs_of(o) for o in c.ops]
                if vp & (R[1] | R[2]): n = max(n, 3)
            elif c.kind in ("valu", "ds", "vmem", "mfma") and vp & (c.src | c.dst): n = max(n, 3)
        if c.kind == "vmem" and sp & c.src: n = max(n, 5)
        if c.kind == "salu" and sp & c.src: n = max(n, 2)
        if sp & regs_of("exec"):
            if c.kind == "mfma": n = max(n, 4)
            if c.kind == "valu" and (c.is_dpp): n = max(n, 5)
            if c.kind == "valu" and c.op.startswith(("v_readlane", "v_readfirstlane", "v_writelane", "v_permlane")): n = max(n, 4)
    if p.kind == "mfma":
        big = {4: 8, 8: 12}[p.passes]; part = {4: 6, 8: 10}[p.passes]; war = {4: 3, 8: 7}[p.passes]
        if c.kind == "mfma":
            if vp & c.srcAB: n = max(n, big)
            if vp & c.srcC:
                if not (c.srcC == p.dst and c.passes == p.passes): n = max(n, part)
            elif vp & c.dst: n = max(n, part)
        elif c.kind in ("valu", "ds", "vmem"):
            if vp & (c.src | c.dst): n = max(n, big)
        if c.kind == "valu" and p.srcC & c.dst: n = max(n, war)
    if p.kind == "salu":
        if regs_of("m0") & p.dst and c.kind == "vmem" and getattr(c, "lds", False): n = max(n, 1)
    if p.kind == "vmem" and getattr(p, "wide_store", False):
        if p.sdata & c.dst: n = max(n, 2 if c.kind == "valu" else 1)
    return n

def fix_hazards(lines, loops=True, verbose=False):
    ins = [Ins(l) for l in lines]
    out = []
    W = 14
    for c in ins:
        if c.kind != "label":
            dist = 0; req = 0
            for p in reversed(out):
                if dist >= W: break
                nn = need(p, c)
                if nn > dist: req = max(req, nn - dist)
                dist += p.states()
            if req > 0:
                if verbose: print("nop", req, "before", c.text)
                out.append(Ins(f"    s_nop {req-1}"))
        out.append(c)
    labels = {i.text.strip()[:-1]: k for k, i in enumerate(out) if i.kind == "label"}
    for k, b in enumerate(out):
        if b.op.startswith(("s_cbranch", "s_branch")) and b.ops and b.ops[0] in labels:
            tgt = labels[b.ops[0]]
            tail = [x for x in out[max(0, k - W):k + 1] if x.kind != "label"]
            head = [x for x in out[tgt:tgt + W + 4] if x.kind != "label"]
            d0 = 0
            for hi, c in enumerate(head):
                dist = d0
                for p in reversed(tail):
                    if dist >= W: break
                    nn = need(p, c)
                    if nn > dist:
                        raise RuntimeError(f"hazard across branch {b.text.strip()}: {p.text.strip()} -> {c.text.strip()} need {nn} have {dist}")
                    dist += p.states()
                d0 += c.states()
                if c.op in ("s_branch", "s_endpgm"): break
    return [i.text for i in out]

class K:
    def __init__(self, name, grid, block, lds, vgpr=256, agpr=0, sgpr=102):
        self.name = name; self.grid = grid; self.block = block; self.lds = lds
        self.vgpr = vgpr; self.agpr = agpr; self.sgpr = sgpr
        self.L = []
        self._lab = 0
        self.haz = True
    def e(self, s):
        if isinstance(s, (list, tuple)):
            for x in s: self.e(x)
            return
        for line in s.split("\n"):
            line = line.strip()
            if line:
                self.L.append("    " + line if not line.endswith(":") else line)
    def label(self, s):
        self.L.append(s + ":")
    def newlabel(self, p="L"):
        self._lab += 1
        return f"{p}_{self.name[:8]}_{self._lab}"
    def text(self):
        L = self.L + ["    s_endpgm"]
        dirs = [l for l in L if l.strip().startswith(".")]
        if self.haz:
            L2 = fix_hazards([l if not l.strip().startswith(".") else "__DIR__" + l.strip().replace(":", "@") + ":" for l in L])
            L = [l[len("__DIR__"):-1].replace("@", ":") if l.startswith("__DIR__") else l for l in L2]
        return (f".globl {self.name}\n.p2align 8\n.type {self.name},@function\n{self.name}:\n" + "\n".join(L) + "\n")
    def desc(self):
        acc = (self.vgpr + 3) // 4 * 4
        nfv = acc + self.agpr if self.agpr else self.vgpr
        return f""".p2align 6
.amdhsa_kernel {self.name}
  .amdhsa_next_free_vgpr {nfv}
  .amdhsa_next_free_sgpr {self.sgpr}
  .amdhsa_accum_offset {acc}
  .amdhsa_group_segment_fixed_size 0
  .amdhsa_kernarg_size 80
  .amdhsa_user_sgpr_count 2
  .amdhsa_user_sgpr_kernarg_segment_ptr 1
  .amdhsa_system_sgpr_workgroup_id_x 1
  .amdhsa_float_denorm_mode_32 3
.end_amdhsa_kernel
"""

def write_file(path, kernels, launches=None, comment=""):
    launches = launches or kernels
    s = HEADER
    for k in launches:
        s += f"; @launch kernel={k.name} grid=({k.grid},1,1) block=({k.block},1,1) lds={k.lds}\n"
    for c in comment.split("\n"):
        if c.strip(): s += "; " + c + "\n"
    s += '.amdgcn_target "amdgcn-amd-amdhsa--gfx950"\n.text\n'
    for k in kernels:
        s += k.text()
    s += '.section .rodata,"a"\n'
    for k in kernels:
        s += k.desc()
    open(path, "w").write(s)

def interleave(mf, fillers, start=0, end=None):
    n = len(mf)
    end = n - 1 if end is None else end
    slots = [[] for _ in range(n)]
    m = len(fillers)
    for i, g in enumerate(fillers):
        pos = start + (i * (end - start + 1)) // m if m else 0
        slots[pos] += g if isinstance(g, list) else [g]
    return slots

def merge(mf, *slotlists):
    out = []
    for i, m in enumerate(mf):
        out.append(m)
        for s in slotlists:
            out += s[i]
    return out

WS_TS = 0x2000000
def ts_stamp(k, idx, on):
    if on: k.e(f"s_memtime s[{80+2*idx}:{81+2*idx}]")
def ts_real(k, idx, on):
    if on: k.e(f"s_memrealtime s[{80+2*idx}:{81+2*idx}]")
def ts_store(k, n, on, srd, wave_s, base=0, tmp=(1, 2)):
    if not on: return
    k.e("s_waitcnt lgkmcnt(0)")
    k.e(f"s_lshl_b32 s3, s2, 3\ns_add_u32 s3, s3, s{wave_s}\ns_lshl_b32 s3, s3, 7\ns_add_u32 s3, s3, {WS_TS + base}")
    k.e(f"s_mov_b64 exec, 1\nv_mov_b32 v{tmp[0]}, 0")
    for i in range(2 * n):
        k.e(f"v_mov_b32 v{tmp[1]}, s{80+i}\nbuffer_store_dword v{tmp[1]}, v{tmp[0]}, s[{srd}:{srd+3}], s3 offen offset:{4*i}\ns_nop 1")
```

```python
from asmlib import *

WS_A2 = 0
WS_GATE = 0x1200000
WS_FLAG = 0x1210000
WS_PART = 0x1400000
LOG2E = 0x3fb8aa3b
SCALE = 0x3e3504f3
NEG = 0xce6e6b28

class Alloc:
    def __init__(self, start): self.n = start
    def get(self, c=1, align=1):
        self.n = (self.n + align - 1) // align * align
        r = self.n; self.n += c; return r

def gen_stage1(NW=4, opt=None):
    opt = opt or {}
    WM = NW // 2
    MT = 16 // WM
    NACC_H = MT * 7 * 4
    NACC_Q = (MT * 2 + (MT + 1) * 4) * 4
    NACC = max(NACC_H, NACC_Q)
    va = Alloc(NACC)
    vLane = va.get(); vAb = [va.get(), va.get()]; vAc = [va.get(), va.get()]
    vh = Alloc(NACC_Q) if NACC_Q + 5 <= NACC_H else va
    vHb = [vh.get(), vh.get()]; vHc = [vh.get(), vh.get()]
    vB = [va.get(), va.get(), va.get()]
    nAi = 32 // NW
    vDA = [va.get() for _ in range(nAi)]; vDH = vh.get()
    nBi = 4 if NW == 4 else 2
    vDB = [va.get() for _ in range(nBi)]
    vT = [va.get() for _ in range(8 if NW == 4 else 14)]
    NV = va.n
    FR = (MT + 7) * 4
    assert NV <= 256 and (NW == 4 or (NV + 3) // 4 * 4 + 2 * FR <= 256), NV
    k = K("s1_kernel", 256, 64 * NW, 163840, vgpr=NV, agpr=2 * FR)
    e = k.e
    e("s_cmp_ge_u32 s2, 256\ns_cbranch_scc1 L1_end")
    TS = opt.get("ts", False)
    ts_real(k, 0, TS); ts_stamp(k, 1, TS)
    e("s_load_dwordx4 s[4:7], s[0:1], 0\ns_load_dwordx2 s[8:9], s[0:1], 32\ns_load_dwordx2 s[10:11], s[0:1], 48\ns_load_dwordx2 s[28:29], s[0:1], 72")
    e(f"v_and_b32 v{vLane}, 63, v0\nv_lshrrev_b32 v1, 6, v0")
    e("s_and_b32 s30, s2, 7\ns_lshr_b32 s31, s2, 3")
    e("v_readfirstlane_b32 s33, v1")
    e("s_lshr_b32 s34, s30, 2\ns_lshl_b32 s34, s34, 2\ns_and_b32 s35, s31, 3\ns_add_u32 s34, s34, s35")
    e("s_and_b32 s35, s30, 3\ns_lshl_b32 s35, s35, 2\ns_lshr_b32 s36, s31, 2\ns_and_b32 s36, s36, 3\ns_add_u32 s35, s35, s36")
    e("s_lshr_b32 s36, s33, 1\ns_and_b32 s37, s33, 1")
    L = f"v{vLane}"
    T = [f"v{t}" for t in vT]
    e(f"s_lshl_b32 s38, s34, 19")
    e(f"s_mul_i32 s39, s33, {8*nAi*2048}\ns_add_u32 s39, s39, s38")
    e(f"v_lshrrev_b32 {T[0]}, 3, {L}")
    e(f"v_lshrrev_b32 {T[1]}, 4, {L}")
    e(f"v_and_b32 {T[2]}, 7, {L}")
    e(f"v_xor_b32 {T[3]}, {T[2]}, {T[1]}")
    e(f"v_xor_b32 {T[4]}, 4, {T[3]}")
    e(f"v_lshlrev_b32 {T[0]}, 11, {T[0]}")
    e(f"v_lshl_add_u32 {T[3]}, {T[3]}, 4, {T[0]}\nv_lshl_add_u32 {T[4]}, {T[4]}, 4, {T[0]}")
    half = nAi // 2
    for i in range(nAi):
        e(f"s_add_u32 s40, s39, {i*8*2048 - (i % half)*1024}")
        e(f"v_add_u32 v{vDA[i]}, s40, {T[3 + (i & 1)]}")
    e(f"v_and_b32 {T[0]}, 15, {L}\nv_lshrrev_b32 {T[1]}, 4, {L}\nv_lshrrev_b32 {T[2]}, 1, {T[0]}")
    e(f"v_xor_b32 {T[3]}, {T[1]}, {T[2]}\nv_xor_b32 {T[4]}, 4, {T[3]}")
    e(f"v_lshlrev_b32 {T[3]}, 4, {T[3]}\nv_lshlrev_b32 {T[4]}, 4, {T[4]}")
    e(f"s_mul_i32 s40, s36, {MT*2048}")
    e(f"v_lshl_add_u32 {T[5]}, {T[0]}, 7, s40")
    e(f"v_add_u32 v{vAb[0]}, {T[5]}, {T[3]}\nv_add_u32 v{vAb[1]}, {T[5]}, {T[4]}")
    hr = 16 // NW
    lgh = 2 if NW == 4 else 1
    e(f"v_lshrrev_b32 {T[6]}, {lgh}, {T[0]}\nv_lshlrev_b32 {T[6]}, 10, {T[6]}\nv_and_b32 {T[7]}, {hr-1}, {T[0]}\nv_lshl_add_u32 {T[6]}, {T[7]}, 7, {T[6]}")
    e(f"v_add_u32 {T[6]}, 0x8000, {T[6]}")
    e(f"v_subrev_u32 {T[5]}, 2048, {T[5]}")
    e(f"s_cmp_eq_u32 s36, 0\ns_cselect_b64 vcc, -1, 0")
    e(f"v_cndmask_b32 {T[5]}, {T[5]}, {T[6]}, vcc")
    e(f"v_add_u32 v{vHb[0]}, {T[5]}, {T[3]}\nv_add_u32 v{vHb[1]}, {T[5]}, {T[4]}")
    e(f"v_lshrrev_b32 {T[0]}, 3, {L}\ns_mul_i32 s40, s33, {hr}\nv_add_u32 {T[0]}, s40, {T[0]}")
    e(f"v_lshrrev_b32 {T[1]}, 1, {T[0]}\nv_and_b32 {T[1]}, 7, {T[1]}\nv_and_b32 {T[2]}, 7, {L}\nv_xor_b32 {T[1]}, {T[1]}, {T[2]}")
    e(f"s_lshl_b32 s40, s34, 8\ns_sub_i32 s40, s40, 16\nv_add_u32 {T[0]}, s40, {T[0]}\nv_max_i32 {T[0]}, 0, {T[0]}")
    e(f"v_lshlrev_b32 {T[0]}, 11, {T[0]}\nv_lshl_add_u32 {T[0]}, {T[1]}, 4, {T[0]}")
    e(f"v_mov_b32 {T[2]}, 0x80000000\nv_cmp_gt_u32 vcc, {8*hr}, {L}\nv_cndmask_b32 v{vDH}, {T[2]}, {T[0]}, vcc")
    e("s_waitcnt lgkmcnt(0)")
    e("s_mov_b32 s12, s4\ns_mov_b32 s13, s5\ns_mov_b32 s14, 0x400000\ns_mov_b32 s15, 0x20000")
    e("s_mov_b32 s20, s28\ns_mov_b32 s21, s29\ns_mov_b32 s22, 0x10000000\ns_mov_b32 s23, 0x20000")
    e("s_mov_b32 s24, s10\ns_mov_b32 s25, s11\ns_mov_b32 s26, 2048\ns_mov_b32 s27, 0x20000")
    RG = 8 // NW
    e(f"v_lshlrev_b32 v1, 5, {L}")
    e(f"s_lshl_b32 s40, s2, 14\ns_mul_i32 s41, s33, {RG*2048}\ns_add_u32 s40, s40, s41")
    e("buffer_load_dwordx4 v[8:11], v1, s[24:27], 0 offen\nbuffer_load_dwordx4 v[12:15], v1, s[24:27], 0 offen offset:16")
    for r in range(RG):
        e(f"buffer_load_dwordx4 v[{16+8*r}:{19+8*r}], v1, s[12:15], s40 offen offset:{r*2048}\nbuffer_load_dwordx4 v[{20+8*r}:{23+8*r}], v1, s[12:15], s40 offen offset:{r*2048+16}")
    if opt.get("only") == "h": e("s_branch L1_h")
    elif opt.get("only") != "q": e("s_cmp_ge_u32 s31, 16\ns_cbranch_scc1 L1_h")

    def gate_compute(nout):
        e(f"s_waitcnt vmcnt({nout})")
        e("s_mov_b32 s40, 0xffff0000\ns_mov_b32 s41, 0x3f803f80")
        for q in range(8):
            e(f"v_lshlrev_b32 v{32+2*q}, 16, v{8+q}\nv_and_b32 v{33+2*q}, s40, v{8+q}")
        for r in range(RG):
            e(f"v_mov_b32 v{4+r}, 0")
        for q in range(8):
            for r in range(RG):
                t = 48 + 4 * r
                e(f"v_lshlrev_b32 v{t}, 16, v{16+8*r+q}\nv_and_b32 v{t+1}, s40, v{16+8*r+q}")
                e(f"v_pk_mul_f32 v[{t}:{t+1}], v[{t}:{t+1}], v[{32+2*q}:{33+2*q}]")
                e(f"v_cvt_pk_bf16_f32 v{t+2}, v{t}, v{t+1}")
                e(f"v_dot2_f32_bf16 v{4+r}, v{t+2}, s41, v{4+r}")
        for sh in (8, 4, 2, 1):
            for r in range(RG):
                e(f"v_add_f32_dpp v{4+r}, v{4+r}, v{4+r} row_ror:{sh} row_mask:0xf bank_mask:0xf")
        for sw in ("v_permlane16_swap_b32", "v_permlane32_swap_b32"):
            for r in range(RG):
                e(f"v_mov_b32 v{48+r}, v{4+r}")
            for r in range(RG):
                e(f"{sw} v{4+r}, v{48+r}")
            for r in range(RG):
                e(f"v_add_f32 v{4+r}, v{4+r}, v{48+r}")
        for r in range(RG):
            z = f"v{4+r}"; t = f"v{48+2*r}"; t2 = f"v{49+2*r}"
            e(f"v_cvt_pk_bf16_f32 {z}, {z}, {z}\nv_and_b32 {z}, s40, {z}")
            e(f"v_mul_f32 {z}, 0xbfb8aa3b, {z}\nv_exp_f32 {z}, {z}\nv_add_f32 {z}, 1.0, {z}\nv_rcp_f32 {z}, {z}")
            e(f"v_cvt_pk_bf16_f32 {z}, {z}, {z}\nv_and_b32 {t}, s40, {z}")
            e(f"v_sub_f32 {z}, 1.0, {t}\nv_cvt_pk_bf16_f32 {z}, {z}, {z}\nv_and_b32 {t2}, s40, {z}")
        e(f"s_lshl_b32 s40, s2, 6\ns_mul_i32 s41, s33, {RG*8}\ns_add_u32 s40, s40, s41\ns_add_u32 s40, s40, {WS_GATE}")
        e("v_mov_b32 v2, 0\nv_mov_b32 v3, 0\ns_mov_b64 exec, 1")
        if RG == 2:
            e("buffer_store_dwordx4 v[48:51], v2, s[20:23], s40 offen")
        else:
            e("buffer_store_dwordx2 v[48:49], v2, s[20:23], s40 offen")
        e(f"s_lshl_b32 s41, s2, 8\ns_add_u32 s41, s41, {WS_FLAG}")
        e("buffer_store_dword v3, v2, s[20:23], s41 offen")
        e("s_mov_b64 exec, -1")

    def body(typ):
        q = typ == "q"
        P = "L1" + typ
        rowstride = 6144 if q else 7168
        ASLOT = 32768 + (NW * 1024 if q else 0)
        if q:
            nb = 3 if NW == 4 else 2
            BG = 12288 if NW == 4 else 16384
            wpart = BG // NW
        else:
            nb = nBi; BG = 16384; wpart = BG // NW
        ABASE = 4 * BG
        assert ABASE + 3 * ASLOT <= 163840
        rows_w = 32 // NW
        cpr = 24 if q else 28
        if q: e("s_mov_b32 s16, s6\ns_mov_b32 s17, s7\ns_mov_b32 s18, 0x600000\ns_mov_b32 s19, 0x20000")
        else: e("s_mov_b32 s16, s8\ns_mov_b32 s17, s9\ns_mov_b32 s18, 0x700000\ns_mov_b32 s19, 0x20000")
        magic = {24: 2731, 28: 2341}[cpr]
        for qq in range(256): assert (qq * magic) >> 16 == qq // cpr
        e(f"s_mul_i32 s40, s33, {rows_w}")
        e(f"s_mul_i32 s41, s35, {128 if q else 448}")
        e(f"s_mov_b32 s42, {rowstride}")
        for i in range(nb):
            e(f"v_add_u32 {T[0]}, {64*i}, {L}")
            e(f"v_mul_u32_u24 {T[1]}, {magic}, {T[0]}\nv_lshrrev_b32 {T[1]}, 16, {T[1]}")
            e(f"v_mul_u32_u24 {T[2]}, {cpr}, {T[1]}\nv_sub_u32 {T[2]}, {T[0]}, {T[2]}")
            e(f"v_add_u32 {T[1]}, s40, {T[1]}")
            if q:
                e(f"v_and_b32 {T[3]}, 2, {T[1]}\nv_lshrrev_b32 {T[4]}, 1, {T[1]}\nv_and_b32 {T[4]}, 4, {T[4]}\nv_or_b32 {T[3]}, {T[3]}, {T[4]}")
                e(f"v_xor_b32 {T[2]}, {T[2]}, {T[3]}")
                e(f"v_lshrrev_b32 {T[3]}, 3, {T[2]}\nv_and_b32 {T[4]}, 7, {T[2]}\nv_lshlrev_b32 {T[3]}, 11, {T[3]}\nv_lshl_add_u32 {T[2]}, {T[4]}, 4, {T[3]}")
            else:
                e(f"v_lshrrev_b32 {T[3]}, 2, {T[1]}\nv_and_b32 {T[3]}, 2, {T[3]}\nv_xor_b32 {T[2]}, {T[2]}, {T[3]}\nv_lshlrev_b32 {T[2]}, 4, {T[2]}")
            e(f"v_mul_lo_u32 {T[1]}, {T[1]}, s42\nv_add3_u32 {T[1]}, {T[1]}, {T[2]}, s41")
            if i: e(f"v_subrev_u32 {T[1]}, {1024*i}, {T[1]}")
            nvalid = rows_w * cpr - 64 * i
            if nvalid < 64:
                e(f"v_mov_b32 {T[2]}, 0x80000000\nv_cmp_gt_u32 vcc, {nvalid}, {L}\nv_cndmask_b32 v{vDB[i]}, {T[2]}, {T[1]}, vcc")
            else:
                e(f"v_mov_b32 v{vDB[i]}, {T[1]}")
        rowb = cpr * 16
        def rowaddr(kk): return (kk // rows_w) * wpart + (kk % rows_w) * rowb
        g_stride = rowaddr(8); second = rowaddr(4)
        for kk in range(32): assert rowaddr(kk) == (kk >> 3) * g_stride + ((kk >> 2) & 1) * second + (kk & 3) * rowb
        e(f"v_lshrrev_b32 {T[0]}, 4, {L}\nv_bfe_u32 {T[1]}, {L}, 2, 2\nv_and_b32 {T[2]}, 3, {L}")
        e(f"v_mul_u32_u24 {T[3]}, {g_stride}, {T[0]}\nv_mul_u32_u24 {T[4]}, {rowb}, {T[1]}\nv_add_u32 {T[3]}, {T[3]}, {T[4]}\nv_lshl_add_u32 {T[3]}, {T[2]}, 3, {T[3]}")
        if q:
            e(f"v_lshrrev_b32 {T[4]}, 1, {T[1]}\nv_and_b32 {T[5]}, 1, {T[0]}\nv_lshl_or_b32 {T[4]}, {T[5]}, 1, {T[4]}")
            e(f"s_lshl_b32 s40, s37, 1")
            for t in range(2):
                e(f"s_add_u32 s41, s40, {t}\nv_xor_b32 {T[5]}, s41, {T[4]}\nv_lshl_add_u32 v{vB[t]}, {T[5]}, 5, {T[3]}")
        else:
            e(f"v_and_b32 {T[4]}, 1, {T[0]}")
            e(f"s_lshl_b32 s40, s37, 3")
            for t in range(2):
                e(f"s_add_u32 s41, s40, {t}\nv_xor_b32 {T[5]}, s41, {T[4]}\nv_lshl_add_u32 v{vB[t]}, {T[5]}, 5, {T[3]}")
            e(f"s_add_u32 s41, s37, 6\nv_xor_b32 {T[5]}, s41, {T[4]}\nv_lshl_add_u32 v{vB[2]}, {T[5]}, 5, {T[3]}")
        sBw = 44
        sAw = 45
        sHw = 46
        sCur, sNext, sNext2, sDma, sKA, sKB, sIt = 47, 48, 49, 50, 51, 52, 53
        e(f"s_mul_i32 s{sBw}, s33, {wpart}\ns_mul_i32 s{sAw}, s33, {nAi*1024}\ns_lshl_b32 s{sHw}, s33, 10\ns_add_u32 s{sHw}, s{sHw}, 32768")
        def dmaA(hf, base_s, base_imm):
            G = []
            for i in range(half):
                ii = hf * half + i
                pre = [f"s_add_u32 m0, s{base_s}, {base_imm + hf*half*1024}"] if i == 0 else []
                G.append((pre, [f"buffer_load_dwordx4 v{vDA[ii]}, s[12:15], s{sKA} offen offset:{i*1024} lds"]))
            return G
        def dmaH(base_s, base_imm):
            return [([f"s_add_u32 m0, s{base_s}, {base_imm}"], [f"buffer_load_dwordx4 v{vDH}, s[12:15], s{sKA} offen lds"])]
        def dmaB(slot):
            G = []
            for i in range(nb):
                pre = [f"s_add_u32 m0, s{sBw}, {slot*BG}"] if i == 0 else []
                G.append((pre, [f"buffer_load_dwordx4 v{vDB[i]}, s[16:19], s{sKB} offen offset:{i*1024} lds"]))
            return G
        def flat(G):
            o = []
            for pre, ld in G: o += pre + ld
            return o
        e(f"s_mov_b32 s{sKA}, 0\ns_mov_b32 s{sKB}, 0")
        def A(t, hf):
            o = flat(dmaA(hf, sAw, ABASE + t * ASLOT))
            if q and hf == 1: o += flat(dmaH(sHw, ABASE + t * ASLOT))
            return o
        stepB = f"s_add_u32 s{sKB}, s{sKB}, {32*rowstride}"
        stepA = f"s_add_u32 s{sKA}, s{sKA}, 128"
        e(A(0, 0) + A(0, 1) + flat(dmaB(0)) + [stepB, stepA] + A(1, 0) + flat(dmaB(1)) + [stepB] + A(1, 1) + flat(dmaB(2)) + [stepB, stepA] + A(2, 0) + flat(dmaB(3)) + [stepB])
        nodd = half + nb; neven = half + nb + (1 if q else 0)
        npro = half + 2 * neven + 2 * nodd
        ts_stamp(k, 2, TS)
        gate_compute(npro)
        ts_stamp(k, 3, TS)
        nacc = NACC_Q if q else NACC_H
        for r in range(nacc): e(f"v_mov_b32 v{r}, 0")
        e(f"s_mov_b32 s{sCur}, {ABASE}\ns_mov_b32 s{sNext}, {ABASE+ASLOT}\ns_mov_b32 s{sNext2}, {ABASE+2*ASLOT}")
        e(f"s_add_u32 s{sDma}, s{sAw}, {ABASE+2*ASLOT}\ns_add_u32 s54, s{sHw}, {ABASE+2*ASLOT}")
        for ks in range(2):
            e(f"v_add_u32 v{vAc[ks]}, {ABASE}, v{vAb[ks]}")
            if q: e(f"v_add_u32 v{vHc[ks]}, {ABASE}, v{vHb[ks]}")
        nA = MT + (1 if q else 0); nBf = 6 if q else 7
        def fA(s, i): return s * FR + 4 * i
        def fB(s, j): return s * FR + 4 * nA + 4 * j
        def reads(s, ks, slot):
            R = []
            Ar = []
            for i in range(MT): Ar.append(f"ds_read_b128 a[{fA(s,i)}:{fA(s,i)+3}], v{vAc[ks]} offset:{i*2048}")
            if q: Ar.append(f"ds_read_b128 a[{fA(s,MT)}:{fA(s,MT)+3}], v{vHc[ks]}")
            Br = []
            for j in range(nBf):
                if q: v, off = vB[j & 1], (j >> 1) * 128
                else: v, off = (vB[j & 1], (j >> 1) * 64) if j < 6 else (vB[2], 0)
                off += slot * BG
                Br.append(f"ds_read_b64_tr_b16 a[{fB(s,j)}:{fB(s,j)+1}], v{v} offset:{off}")
                Br.append(f"ds_read_b64_tr_b16 a[{fB(s,j)+2}:{fB(s,j)+3}], v{v} offset:{off+second}")
            while Ar or Br:
                if Br: R.append(Br.pop(0))
                if Br: R.append(Br.pop(0))
                if Ar: R.append(Ar.pop(0))
            return R
        if q:
            accQ = lambda mt, t: (mt * 2 + t) * 4
            accK = lambda m1, t: MT * 8 + (m1 * 2 + t) * 4
            accV = lambda m1, t: MT * 8 + (MT + 1) * 8 + (t * (MT + 1) + m1) * 4
        else:
            accH = lambda mt, j: (mt * 7 + j) * 4
        def mfmas(s):
            M = []
            def mm(d, a, b): M.append(f"v_mfma_f32_16x16x32_bf16 v[{d}:{d+3}], a[{a}:{a+3}], a[{b}:{b+3}], v[{d}:{d+3}]")
            if q:
                for m1 in range(MT + 1):
                    x = fA(s, m1 - 1) if m1 else fA(s, MT)
                    for t in range(2):
                        if m1: mm(accQ(m1 - 1, t), fB(s, t), x)
                    for t in range(2): mm(accK(m1, t), fB(s, 2 + t), x)
                    for t in range(2): mm(accV(m1, t), x, fB(s, 4 + t))
            else:
                for mt in range(MT):
                    for j in range(7): mm(accH(mt, j), fB(s, j), fA(s, mt))
            return M
        e(f"s_waitcnt vmcnt({npro - half - neven})\ns_barrier")
        ts_stamp(k, 4, TS)
        e(reads(0, 0, 0))
        e(f"s_mov_b32 s{sIt}, 8")
        e(".p2align 6")
        k.label(P + "_loop")
        for u in range(4):
            e(f"s_waitcnt lgkmcnt(0)\ns_waitcnt vmcnt({nodd + neven})\ns_barrier")
            M = mfmas(u & 1)
            n = len(M)
            pre = []
            if u & 1:
                for ks in range(2):
                    pre.append(f"v_add_u32 v{vAc[ks]}, s{sNext}, v{vAb[ks]}")
                    if q: pre.append(f"v_add_u32 v{vHc[ks]}, s{sNext}, v{vHb[ks]}")
                pre += [f"s_add_u32 s{sDma}, s{sCur}, s{sAw}", f"s_add_u32 s54, s{sCur}, s{sHw}", stepA,
                        f"s_cmp_lt_u32 s{sKA}, 2048", "s_cselect_b32 s14, 0x400000, 0",
                        f"s_mov_b32 s55, s{sCur}", f"s_mov_b32 s{sCur}, s{sNext}", f"s_mov_b32 s{sNext}, s{sNext2}", f"s_mov_b32 s{sNext2}, s55"]
                D = dmaA(0, sDma, 0) + dmaB(u)
            else:
                D = dmaA(1, sDma, 0) + (dmaH(54, 0) if q else []) + dmaB(u)
            R = reads((u + 1) & 1, (u + 1) & 1, (u + 1) % 4)
            slots = [[] for _ in range(n)]
            if opt.get("nomfma"): pass
            for i, p in enumerate(pre): slots[i // 3].append(p)
            r0 = opt.get("r0", 0); r1 = opt.get("r1", (n * 3) // 4)
            for i, r in enumerate(R):
                pos = r0 + (i * (r1 - r0)) // len(R)
                if i >= 2: pos = max(pos, 2 if (u & 1) else 0)
                slots[pos].append(r)
            d0 = opt.get("d0", 5 if NW == 4 else 4); d1 = opt.get("d1", n - 3)
            for i, (p, ld) in enumerate(D):
                pos = d0 + (i * (d1 - d0)) // len(D)
                slots[pos - 1] += p
                slots[pos] += ld
            slots[n - 1].append(stepB)
            if u == 3: slots[n - 2] += [f"s_sub_u32 s{sIt}, s{sIt}, 1"]
            for i in range(n):
                if not opt.get("nomfma"): e(M[i])
                for x in slots[i]:
                    if opt.get("nods") and x.startswith("ds_"): continue
                    if opt.get("nodma") and x.startswith("buffer_"): continue
                    e(x)
        e(f"s_cmp_lg_u32 s{sIt}, 0\ns_cbranch_scc1 {P}_loop")
        e("s_waitcnt lgkmcnt(0)")
        ts_stamp(k, 5, TS)
        st = opt.get("st", "")
        e(f"v_lshlrev_b32 {T[0]}, 4, {L}")
        if NW == 4:
            e(f"s_lshl_b32 s40, s34, 1\ns_add_u32 s40, s40, s36\ns_mul_i32 s40, s40, {144*8192}")
        else:
            e(f"s_lshl_b32 s40, s34, 1\ns_lshr_b32 s41, s36, 1\ns_add_u32 s40, s40, s41\ns_mul_i32 s40, s40, {144*8192}\ns_and_b32 s41, s36, 1\ns_lshl_b32 s41, s41, 12\ns_add_u32 s40, s40, s41")
        if not q:
            e(f"s_mul_i32 s41, s35, {7*8192}\ns_add_u32 s40, s40, s41\ns_add_u32 s40, s40, {32*8192}")
            e(f"s_add_u32 s42, s40, {3*8192}\ns_lshl_b32 s41, s37, 3\ns_add_u32 s42, s42, s41")
            e(f"s_lshl_b32 s41, s37, 15\ns_add_u32 s40, s40, s41")
            for pr in range(3):
                for mt in range(MT):
                    a = accH(mt, 2 * pr); b = accH(mt, 2 * pr + 1)
                    e(f"v_cvt_pk_bf16_f32 v{a}, v{a}, v{a+1}\nv_cvt_pk_bf16_f32 v{a+1}, v{a+2}, v{a+3}\nv_cvt_pk_bf16_f32 v{a+2}, v{b}, v{b+1}\nv_cvt_pk_bf16_f32 v{a+3}, v{b+2}, v{b+3}")
                    for r in range(4): e(f"v_pk_max_i16 v{a+r}, v{a+r}, 0")
                    if mt % 4 == 0: e(f"s_add_u32 s43, s40, {pr*8192 + mt*1024}")
                    e(f"buffer_store_dwordx4 v[{a}:{a+3}], {T[0]}, s[20:23], s43 offen offset:{(mt%4)*1024} {st}")
            for mt in range(MT):
                a = accH(mt, 6)
                e(f"v_cvt_pk_bf16_f32 v{a}, v{a}, v{a+1}\nv_cvt_pk_bf16_f32 v{a+1}, v{a+2}, v{a+3}")
                for r in range(2): e(f"v_pk_max_i16 v{a+r}, v{a+r}, 0")
                if mt % 4 == 0: e(f"s_add_u32 s43, s42, {mt*1024}")
                e(f"buffer_store_dwordx2 v[{a}:{a+1}], {T[0]}, s[20:23], s43 offen offset:{(mt%4)*1024} {st}")
        else:
            e(f"s_lshl_b32 s41, s35, 1\ns_add_u32 s41, s41, s37\ns_lshl_b32 s41, s41, 13\ns_add_u32 s40, s40, s41")
            i_, g_ = T[1], T[2]
            e(f"v_and_b32 {i_}, 15, {L}\nv_lshrrev_b32 {g_}, 4, {L}")
            e(f"v_and_b32 {T[3]}, 1, {i_}\nv_cmp_eq_u32 s[56:57], 1, {T[3]}")
            e(f"v_lshl_add_u32 {T[4]}, {g_}, 2, {T[3]}")
            e(f"v_cmp_le_u32 s[58:59], {T[4]}, {i_}")
            e(f"v_add_u32 {T[4]}, 2, {T[4]}\nv_cmp_le_u32 s[60:61], {T[4]}, {i_}")
            e("s_or_b32 s41, s34, s36\ns_cmp_eq_u32 s41, 0\ns_cselect_b64 s[62:63], -1, 0")
            e("s_andn2_b64 s[64:65], s[62:63], s[58:59]\ns_andn2_b64 s[66:67], s[62:63], s[60:61]")
            sel = [vAb[0], vAb[1], vAc[0], vAc[1]]
            z_ = T[5]
            e(f"v_mov_b32 {z_}, 0x0c0c0c0c")
            e(f"v_mov_b32 {T[3]}, 0x0c0c0100\nv_mov_b32 {T[4]}, 0x01000c0c\nv_cndmask_b32 {T[6]}, {T[3]}, {T[4]}, s[56:57]")
            e(f"v_cndmask_b32 v{sel[0]}, {T[6]}, {z_}, s[58:59]\nv_cndmask_b32 v{sel[2]}, {z_}, {T[6]}, s[58:59]")
            e(f"v_mov_b32 {T[3]}, 0x0c0c0302\nv_mov_b32 {T[4]}, 0x03020c0c\nv_cndmask_b32 {T[6]}, {T[3]}, {T[4]}, s[56:57]")
            e(f"v_cndmask_b32 v{sel[1]}, {T[6]}, {z_}, s[60:61]\nv_cndmask_b32 v{sel[3]}, {z_}, {T[6]}, s[60:61]")
            e(f"s_mov_b32 s68, 0xffff0000\ns_mov_b32 s69, {SCALE}\ns_mov_b32 s70, {LOG2E}\nv_mov_b32 {z_}, {NEG}")
            def pack8(a, b):
                e(f"v_cvt_pk_bf16_f32 v{a}, v{a}, v{a+1}\nv_cvt_pk_bf16_f32 v{a+1}, v{a+2}, v{a+3}\nv_cvt_pk_bf16_f32 v{a+2}, v{b}, v{b+1}\nv_cvt_pk_bf16_f32 v{a+3}, v{b+2}, v{b+3}")
            for m1 in range(MT + 1): pack8(accK(m1, 0), accK(m1, 1))
            for mt in range(MT): pack8(accQ(mt, 0), accQ(mt, 1))
            for mt in range(MT):
                sp, sc = accQ(mt, 1), accK(mt + 1, 1)
                qf = accQ(mt, 0)
                e(f"v_mfma_f32_16x16x32_bf16 v[{sp}:{sp+3}], v[{accK(mt,0)}:{accK(mt,0)+3}], v[{qf}:{qf+3}], 0")
                e(f"v_mfma_f32_16x16x32_bf16 v[{sc}:{sc+3}], v[{accK(mt+1,0)}:{accK(mt+1,0)+3}], v[{qf}:{qf+3}], 0")
            Vh = lambda m1, t: accV(0, t) + 2 * m1
            for t in range(2):
                for m1 in range(MT + 1):
                    a = accV(m1, t); d = Vh(m1, t)
                    e(f"v_cvt_pk_bf16_f32 v{d}, v{a}, v{a+1}\nv_cvt_pk_bf16_f32 v{d+1}, v{a+2}, v{a+3}")
            def each(f):
                for mt in range(MT): e(f(mt, accQ(mt, 1), accK(mt + 1, 1)))
            each(lambda mt, p, c: f"v_cndmask_b32 v{p}, v{p}, v{p+1}, s[56:57]\nv_cndmask_b32 v{p+1}, v{p+2}, v{p+3}, s[56:57]\n"
                                  f"v_cndmask_b32 v{c}, v{c}, v{c+1}, s[56:57]\nv_cndmask_b32 v{c+1}, v{c+2}, v{c+3}, s[56:57]")
            each(lambda mt, p, c: f"v_cndmask_b32 v{p}, v{p}, v{c}, s[58:59]\nv_cndmask_b32 v{p+1}, v{p+1}, v{c+1}, s[60:61]")
            each(lambda mt, p, c: f"v_cvt_pk_bf16_f32 v{c}, v{p}, v{p+1}")
            each(lambda mt, p, c: f"v_lshlrev_b32 v{p}, 16, v{c}\nv_and_b32 v{p+1}, s68, v{c}")
            each(lambda mt, p, c: f"v_mul_f32 v{p}, s69, v{p}\nv_mul_f32 v{p+1}, s69, v{p+1}")
            each(lambda mt, p, c: f"v_cvt_pk_bf16_f32 v{c}, v{p}, v{p+1}")
            each(lambda mt, p, c: f"v_lshlrev_b32 v{p}, 16, v{c}\nv_and_b32 v{p+1}, s68, v{c}")
            p0 = accQ(0, 1)
            e(f"v_cndmask_b32 v{p0}, v{p0}, {z_}, s[64:65]\nv_cndmask_b32 v{p0+1}, v{p0+1}, {z_}, s[66:67]")
            each(lambda mt, p, c: f"v_max_f32 v{c}, v{p}, v{p+1}")
            for sw in ("v_permlane16_swap_b32", "v_permlane32_swap_b32"):
                each(lambda mt, p, c: f"v_mov_b32 v{c+1}, v{c}")
                each(lambda mt, p, c: f"{sw} v{c}, v{c+1}")
                each(lambda mt, p, c: f"v_max_f32 v{c}, v{c}, v{c+1}")
            each(lambda mt, p, c: f"v_sub_f32 v{p}, v{p}, v{c}\nv_sub_f32 v{p+1}, v{p+1}, v{c}")
            each(lambda mt, p, c: f"v_mul_f32 v{p}, s70, v{p}\nv_mul_f32 v{p+1}, s70, v{p+1}")
            each(lambda mt, p, c: f"v_exp_f32 v{p}, v{p}\nv_exp_f32 v{p+1}, v{p+1}")
            each(lambda mt, p, c: f"v_add_f32 v{c}, v{p}, v{p+1}")
            for sw in ("v_permlane16_swap_b32", "v_permlane32_swap_b32"):
                each(lambda mt, p, c: f"v_mov_b32 v{c+1}, v{c}")
                each(lambda mt, p, c: f"{sw} v{c}, v{c+1}")
                each(lambda mt, p, c: f"v_add_f32 v{c}, v{c}, v{c+1}")
            each(lambda mt, p, c: f"v_rcp_f32 v{c}, v{c}")
            each(lambda mt, p, c: f"v_mul_f32 v{p}, v{p}, v{c}\nv_mul_f32 v{p+1}, v{p+1}, v{c}")
            each(lambda mt, p, c: f"v_cvt_pk_bf16_f32 v{c}, v{p}, v{p+1}")
            each(lambda mt, p, c: "\n".join(f"v_perm_b32 v{p+r}, v{c}, v{c}, v{sel[r]}" for r in range(4)))
            for mt in range(MT):
                p = accQ(mt, 1)
                for t in range(2):
                    d = accQ(mt, 0) if t == 0 else accK(mt + 1, 1)
                    e(f"v_mfma_f32_16x16x32_bf16 v[{d}:{d+3}], v[{Vh(mt,t)}:{Vh(mt,t)+3}], v[{p}:{p+3}], 0")
            for mt in range(MT):
                a = accQ(mt, 0); pack8(a, accK(mt + 1, 1))
                if mt % 4 == 0: e(f"s_add_u32 s43, s40, {mt*1024}")
                e(f"buffer_store_dwordx4 v[{a}:{a+3}], {T[0]}, s[20:23], s43 offen offset:{(mt%4)*1024} {st}")
        ts_stamp(k, 6, TS)
        if TS: e("s_waitcnt vmcnt(0)")
        ts_stamp(k, 7, TS); ts_real(k, 8, TS)
        ts_store(k, 9, TS, 20, 33)
    if opt.get("only") != "h": body("q")
    e("s_endpgm")
    k.label("L1_h")
    body("h")
    k.label("L1_end")
    return k

if __name__ == "__main__":
    write_file(f"s1_w4.s", [gen_stage1(4)])
    write_file(f"s1_w4_ts.s", [gen_stage1(4, dict(ts=1))])
    write_file(f"s1_w8h_ts.s", [gen_stage1(8, dict(only="h", ts=1))])
    write_file(f"s1_w4h_nodma.s", [gen_stage1(4, dict(only="h", nodma=1, ts=1))])
    write_file(f"s1_w4h_nods.s", [gen_stage1(4, dict(only="h", nodma=1, nods=1, ts=1))])
    write_file(f"s1_w4h_nomfma.s", [gen_stage1(4, dict(only="h", nomfma=1, ts=1))])
```

```python
from asmlib import *
from gen1 import WS_A2, WS_GATE, WS_FLAG, WS_PART, Alloc

def gen_stage2(opt=None):
    opt = opt or {}
    N1 = opt.get("n1", 64)
    NS = 8; SLOT = 16384
    TS = opt.get("ts", False)
    va = Alloc(0)
    accA = va.get(64); accB = va.get(64)
    vLane = va.get()
    vAr = [va.get(), va.get()]
    vBr = [[va.get() for _ in range(4)] for _ in range(2)]
    vDA = va.get(); vDB = [va.get(), va.get()]
    vG = va.get(8, 2)
    vT = [va.get() for _ in range(8)]
    vP = va.get(64, 4)
    NV = va.n
    k = K("s2_kernel", 256, 256, NS * SLOT, vgpr=NV, agpr=64)
    e = k.e
    L = f"v{vLane}"; T = [f"v{t}" for t in vT]
    e("s_cmp_ge_u32 s2, 256\ns_cbranch_scc1 L2_end")
    ts_real(k, 0, TS); ts_stamp(k, 1, TS)
    e("s_load_dwordx2 s[4:5], s[0:1], 16\ns_load_dwordx2 s[6:7], s[0:1], 40\ns_load_dwordx2 s[8:9], s[0:1], 56\ns_load_dwordx2 s[28:29], s[0:1], 72")
    e(f"v_and_b32 {L}, 63, v0\nv_lshrrev_b32 v1, 6, v0")
    e("s_and_b32 s30, s2, 7\ns_lshr_b32 s31, s2, 3")
    e("v_readfirstlane_b32 s33, v1")
    e("s_and_b32 s32, s30, 1")
    e("s_lshr_b32 s34, s30, 1\ns_lshl_b32 s34, s34, 2\ns_lshr_b32 s35, s31, 3\ns_add_u32 s34, s34, s35")
    e("s_and_b32 s35, s31, 7")
    e("s_lshr_b32 s36, s33, 1\ns_and_b32 s37, s33, 1")
    e(f"s_lshl_b32 s40, s33, 11\nv_lshl_add_u32 v{vDA}, {L}, 4, s40")
    e(f"v_lshrrev_b32 {T[0]}, 4, {L}\nv_and_b32 {T[1]}, 15, {L}")
    e(f"s_lshl_b32 s41, s33, 14\ns_lshl_b32 s42, s35, 8\ns_add_u32 s41, s41, s42")
    for i in range(2):
        e(f"v_lshl_add_u32 {T[2]}, {T[0]}, 1, {8*i}\nv_xor_b32 {T[2]}, {T[2]}, {T[1]}\nv_lshlrev_b32 {T[2]}, 4, {T[2]}")
        e(f"v_lshl_add_u32 {T[2]}, {T[0]}, 11, {T[2]}\ns_add_u32 s42, s41, {i*8192 + 4096 - 2048 - 1024*i}\nv_add_u32 v{vDB[i]}, s42, {T[2]}")
    sW = 44; sKA = 45; sKB = 46; sIt = 47
    e(f"s_lshl_b32 s{sW}, s33, 12")
    e(f"s_mul_i32 s{sKA}, s34, {144*8192}")
    e("s_waitcnt lgkmcnt(0)")
    e("s_mov_b32 s12, s28\ns_mov_b32 s13, s29\ns_mov_b32 s15, 0x20000")
    e("s_sub_u32 s48, s6, 4096\ns_subb_u32 s49, s7, 0")
    e("s_sub_u32 s16, s4, 4096\ns_subb_u32 s17, s5, 0\ns_mov_b32 s19, 0x20000")
    e(f"s_add_u32 s14, s{sKA}, {144*8192}\ns_mov_b32 s18, {0x200000+4096}\ns_mov_b32 s{sKB}, 0")
    e("s_cmp_eq_u32 s32, 0\ns_cbranch_scc1 L2_isF")
    e(f"s_mov_b32 s16, s48\ns_mov_b32 s17, s49\ns_mov_b32 s18, {N1*65536+4096}")
    e(f"s_add_u32 s{sKA}, s{sKA}, {32*8192}\ns_add_u32 s14, s{sKA}, {N1*8192}")
    k.label("L2_isF")
    aux = opt.get("aux", "")
    def dma(slot):
        return [([f"s_add_u32 m0, s{sW}, {slot*SLOT}"], [f"buffer_load_dwordx4 v{vDA}, s[12:15], s{sKA} offen {aux} lds"]),
                ([], [f"buffer_load_dwordx4 v{vDA}, s[12:15], s{sKA} offen offset:1024 {aux} lds"]),
                ([], [f"buffer_load_dwordx4 v{vDB[0]}, s[16:19], s{sKB} offen offset:2048 {aux} lds"]),
                ([], [f"buffer_load_dwordx4 v{vDB[1]}, s[16:19], s{sKB} offen offset:3072 {aux} lds",
                      f"s_add_u32 s{sKA}, s{sKA}, 8192", f"s_add_u32 s{sKB}, s{sKB}, 65536"])]
    for j in range(7):
        for p, l in dma(j): e(p + l)
    ts_stamp(k, 2, TS)
    e("s_mov_b32 s20, s28\ns_mov_b32 s21, s29\ns_mov_b32 s22, 0x10000000\ns_mov_b32 s23, 0x20000")
    e("s_mov_b32 s24, s8\ns_mov_b32 s25, s9\ns_mov_b32 s26, 0x400000\ns_mov_b32 s27, 0x20000")
    e(f"v_lshlrev_b32 {T[2]}, 3, {T[1]}\ns_lshl_b32 s40, s34, 10\ns_lshl_b32 s41, s36, 9\ns_add_u32 s40, s40, s41\ns_add_u32 s40, s40, {WS_GATE}")
    for mt in range(4):
        e(f"buffer_load_dwordx2 v[{vG+2*mt}:{vG+2*mt+1}], {T[2]}, s[20:23], s40 offen offset:{mt*128}")
    e(f"s_lshl_b32 s40, s36, 13\nv_lshl_add_u32 v{vAr[0]}, {L}, 4, s40\nv_add_u32 v{vAr[1]}, 0x10000, v{vAr[0]}")
    e(f"v_bfe_u32 {T[2]}, {L}, 2, 2\nv_and_b32 {T[3]}, 3, {L}\nv_and_b32 {T[4]}, 1, {T[0]}\nv_lshrrev_b32 {T[5]}, 1, {T[0]}")
    e(f"v_lshlrev_b32 {T[5]}, 12, {T[5]}\nv_lshl_add_u32 {T[5]}, {T[4]}, 10, {T[5]}\nv_lshl_add_u32 {T[5]}, {T[2]}, 8, {T[5]}\nv_lshl_add_u32 {T[5]}, {T[3]}, 3, {T[5]}\nv_add_u32 {T[5]}, 2048, {T[5]}")
    e(f"v_lshl_add_u32 {T[4]}, {T[4]}, 2, {T[2]}\ns_lshl_b32 s40, s37, 2")
    for j in range(4):
        e(f"s_add_u32 s41, s40, {j}\nv_xor_b32 {T[6]}, s41, {T[4]}\nv_lshl_add_u32 v{vBr[0][j]}, {T[6]}, 5, {T[5]}\nv_add_u32 v{vBr[1][j]}, 0x10000, v{vBr[0][j]}")
    for r in range(128): e(f"v_mov_b32 v{r}, 0")
    fA = lambda s, i: s * 32 + 4 * i
    fB = lambda s, j: s * 32 + 16 + 4 * j
    def reads(s, slot):
        w = slot // 4; o = (slot % 4) * SLOT
        R = []
        for i in range(4):
            R.append(f"ds_read_b64_tr_b16 a[{fB(s,i)}:{fB(s,i)+1}], v{vBr[w][i]} offset:{o}")
            R.append(f"ds_read_b64_tr_b16 a[{fB(s,i)+2}:{fB(s,i)+3}], v{vBr[w][i]} offset:{o+8192}")
            R.append(f"ds_read_b128 a[{fA(s,i)}:{fA(s,i)+3}], v{vAr[w]} offset:{o + (i>>1)*4096 + (i&1)*1024}")
        return R
    def mfmas(acc, s):
        return [f"v_mfma_f32_16x16x32_bf16 v[{acc+(mt*4+j)*4}:{acc+(mt*4+j)*4+3}], a[{fB(s,j)}:{fB(s,j)+3}], a[{fA(s,mt)}:{fA(s,mt)+3}], v[{acc+(mt*4+j)*4}:{acc+(mt*4+j)*4+3}]"
                for mt in range(4) for j in range(4)]
    def iteration(acc, switch=False, last=None):
        for u in range(8):
            e("s_waitcnt lgkmcnt(0)")
            if u % 2 == 0: e("s_waitcnt vmcnt(16)\ns_barrier")
            M = mfmas(acc, u & 1)
            slots = [[] for _ in range(16)]
            R = reads((u + 1) & 1, (u + 1) % 8)
            for i, r in enumerate(R): slots[i].append(r)
            D = dma((u + 7) % 8)
            for i, (p, l) in enumerate(D):
                pos = 2 + 3 * i
                slots[pos - 1] += p; slots[pos] += l
            if switch and u == 0:
                slots[12] += [f"s_mov_b32 s16, s48", "s_mov_b32 s17, s49", f"s_mov_b32 s18, {0x700000+4096}",
                              f"s_add_u32 s{sKA}, s{sKA}, {N1*8192}", f"s_mov_b32 s{sKB}, {N1*65536}"]
            if last and u == 7: slots[13] += [f"s_sub_u32 s{sIt}, s{sIt}, 1"]
            for i in range(16):
                if not opt.get("nomfma"): e(M[i])
                for x in slots[i]:
                    if opt.get("nods") and x.startswith("ds_"): continue
                    if opt.get("nodma") and x.startswith("buffer_"): continue
                    e(x)
        if last: e(f"s_cmp_lg_u32 s{sIt}, 0\ns_cbranch_scc1 {last}")
    e("s_waitcnt vmcnt(28)\ns_barrier")
    ts_stamp(k, 3, TS)
    e(reads(0, 0))
    e(f"s_mov_b32 s{sIt}, {N1//8}")
    e("s_cmp_lg_u32 s32, 0\ns_cbranch_scc1 L2_loopB")
    e(f"s_mov_b32 s{sIt}, 3")
    e(".p2align 6")
    k.label("L2_loopA")
    iteration(accA, last="L2_loopA")
    iteration(accA, switch=True)
    e(f"s_mov_b32 s{sIt}, {(112-N1)//8}")
    e(".p2align 6")
    k.label("L2_loopB")
    iteration(accB, last="L2_loopB")
    e("s_waitcnt lgkmcnt(0)")
    ts_stamp(k, 4, TS)
    e(f"s_lshl_b32 s40, s34, 3\ns_add_u32 s40, s40, s35")
    e(f"s_lshl_b32 s41, s40, 8\ns_add_u32 s41, s41, {WS_FLAG}")
    e(f"s_lshl_b32 s40, s40, 16\ns_lshl_b32 s42, s33, 14\ns_add_u32 s40, s40, s42\ns_add_u32 s40, s40, {WS_PART}")
    e(f"v_lshlrev_b32 {T[0]}, 4, {L}\nv_mov_b32 {T[1]}, 0")
    e("s_cmp_eq_u32 s32, 0\ns_cbranch_scc1 L2_fin")
    for r in range(16):
        e(f"buffer_store_dwordx4 v[{accB+4*r}:{accB+4*r+3}], {T[0]}, s[20:23], s40 offen offset:{(r%4)*1024} sc0 sc1")
        if r % 4 == 3: e("s_add_u32 s40, s40, 4096")
    e("s_waitcnt vmcnt(0)\ns_barrier")
    ts_stamp(k, 5, TS)
    e("s_cmp_lg_u32 s33, 0\ns_cbranch_scc1 L2_pdone")
    e(f"v_mov_b32 {T[2]}, 1\ns_mov_b64 exec, 1\nbuffer_store_dword {T[2]}, {T[1]}, s[20:23], s41 offen sc0 sc1\ns_mov_b64 exec, -1")
    k.label("L2_pdone")
    ts_stamp(k, 6, TS)
    if TS: e("s_waitcnt vmcnt(0)")
    ts_stamp(k, 7, TS); ts_real(k, 8, TS)
    ts_store(k, 9, TS, 20, 33, base=0x100000, tmp=(vT[6], vT[7]))
    e("s_endpgm")
    k.label("L2_fin")
    e("s_cmp_lg_u32 s33, 0\ns_cbranch_scc1 L2_got\ns_mov_b32 s43, 0")
    k.label("L2_poll")
    e(f"buffer_load_dword {T[2]}, {T[1]}, s[20:23], s41 offen sc0 sc1\ns_waitcnt vmcnt(0)\nv_readfirstlane_b32 s42, {T[2]}\ns_cmp_eq_u32 s42, 1\ns_cbranch_scc1 L2_got\ns_sleep 1\ns_add_u32 s43, s43, 1\ns_cmp_lt_u32 s43, 100000\ns_cbranch_scc1 L2_poll")
    k.label("L2_got")
    e("s_barrier")
    ts_stamp(k, 5, TS)
    for r in range(16):
        e(f"buffer_load_dwordx4 v[{vP+4*r}:{vP+4*r+3}], {T[0]}, s[20:23], s40 offen offset:{(r%4)*1024} sc0 sc1")
        if r % 4 == 3: e("s_add_u32 s40, s40, 4096")
    for mt in range(4):
        for r in range(16): e(f"v_mul_f32 v{accA+mt*16+r}, v{vG+2*mt}, v{accA+mt*16+r}")
    e(f"v_and_b32 {T[2]}, 15, {L}\nv_lshrrev_b32 {T[3]}, 4, {L}\nv_and_b32 {T[4]}, 1, {T[3]}\nv_lshrrev_b32 {T[3]}, 1, {T[3]}")
    e(f"v_lshlrev_b32 {T[2]}, 11, {T[2]}\nv_lshl_add_u32 {T[2]}, {T[4]}, 5, {T[2]}\nv_lshl_add_u32 {T[2]}, {T[3]}, 4, {T[2]}")
    e("s_lshl_b32 s42, s34, 18\ns_lshl_b32 s43, s36, 17\ns_add_u32 s42, s42, s43\ns_lshl_b32 s43, s35, 8\ns_add_u32 s42, s42, s43\ns_lshl_b32 s43, s37, 7\ns_add_u32 s42, s42, s43")
    for mt in range(4):
        e(f"s_waitcnt vmcnt({12 - 4*mt + 2*mt})")
        for r in range(16): e(f"v_add_f32 v{accB+mt*16+r}, v{accB+mt*16+r}, v{vP+mt*16+r}")
        for r in range(16): e(f"v_fma_f32 v{accA+mt*16+r}, v{vG+2*mt+1}, v{accB+mt*16+r}, v{accA+mt*16+r}")
        for pr in range(2):
            a = accA + mt * 16 + pr * 8
            e(f"v_cvt_pk_bf16_f32 v{a}, v{a}, v{a+1}\nv_cvt_pk_bf16_f32 v{a+1}, v{a+2}, v{a+3}\nv_cvt_pk_bf16_f32 v{a+2}, v{a+4}, v{a+5}\nv_cvt_pk_bf16_f32 v{a+3}, v{a+6}, v{a+7}")
        for pr in range(2):
            a = accA + mt * 16 + pr * 8
            e(f"v_permlane16_swap_b32 v{a}, v{a+2}\nv_permlane16_swap_b32 v{a+1}, v{a+3}")
        for pr in range(2):
            a = accA + mt * 16 + pr * 8
            e(f"buffer_store_dwordx4 v[{a}:{a+3}], {T[2]}, s[24:27], s42 offen offset:{pr*64}")
        e("s_add_u32 s42, s42, 32768")
    ts_stamp(k, 6, TS)
    if TS: e("s_waitcnt vmcnt(0)")
    ts_stamp(k, 7, TS); ts_real(k, 8, TS)
    ts_store(k, 9, TS, 20, 33, base=0x100000, tmp=(vT[6], vT[7]))
    k.label("L2_end")
    return k

if __name__ == "__main__":
    from gen1 import gen_stage1
    write_file("full.s", [gen_stage1(4), gen_stage2()])
    write_file("full_ts.s", [gen_stage1(4, dict(ts=1)), gen_stage2(dict(ts=1))])
```

```python
from asmlib import *

WS_A2 = 0
WS_GATE = 0x1200000
WS_FLAG = 0x1210000
WS_PART = 0x1400000
LOG2E = 0x3fb8aa3b
SCALE = 0x3e3504f3
NEG = 0xce6e6b28

class Alloc:
    def __init__(self, start): self.n = start
    def get(self, c=1, align=1):
        self.n = (self.n + align - 1) // align * align
        r = self.n; self.n += c; return r

def gen_stage1(NW=4, opt=None):
    opt = opt or {}
    WM = NW // 2
    MT = 16 // WM
    NACC_H = MT * 7 * 4
    NACC_Q = (MT * 2 + (MT + 1) * 4) * 4
    NACC = max(NACC_H, NACC_Q)
    va = Alloc(NACC)
    vLane = va.get(); vAb = [va.get(), va.get()]; vAc = [va.get(), va.get()]
    vh = Alloc(NACC_Q) if NACC_Q + 5 <= NACC_H else va
    vHb = [vh.get(), vh.get()]; vHc = [vh.get(), vh.get()]
    vB = [va.get(), va.get(), va.get()]
    nAi = 32 // NW
    vDA = [va.get() for _ in range(nAi)]; vDH = vh.get()
    nBi = 4 if NW == 4 else 2
    vDB = [va.get() for _ in range(nBi)]
    vPF = [va.get(), va.get()]
    vT = [va.get() for _ in range(8 if NW == 4 else 14)]
    NV = va.n
    FR = (MT + 7) * 4
    assert NV <= 256 and (NW == 4 or (NV + 3) // 4 * 4 + 2 * FR <= 256), NV
    k = K("s1_kernel", 256, 64 * NW, 163840, vgpr=NV, agpr=2 * FR)
    e = k.e
    e("s_cmp_ge_u32 s2, 256\ns_cbranch_scc1 L1_end")
    TS = opt.get("ts", False)
    ts_real(k, 0, TS); ts_stamp(k, 1, TS)
    e("s_load_dwordx4 s[4:7], s[0:1], 0\ns_load_dwordx2 s[8:9], s[0:1], 32\ns_load_dwordx2 s[10:11], s[0:1], 48\ns_load_dwordx2 s[28:29], s[0:1], 72")
    e("s_load_dwordx2 s[72:73], s[0:1], 16\ns_load_dwordx2 s[76:77], s[0:1], 40")
    e(f"v_and_b32 v{vLane}, 63, v0\nv_lshrrev_b32 v1, 6, v0")
    e("s_and_b32 s30, s2, 7\ns_lshr_b32 s31, s2, 3")
    e("v_readfirstlane_b32 s33, v1")
    e("s_lshr_b32 s34, s30, 2\ns_lshl_b32 s34, s34, 2\ns_and_b32 s35, s31, 3\ns_add_u32 s34, s34, s35")
    e("s_and_b32 s35, s30, 3\ns_lshl_b32 s35, s35, 2\ns_lshr_b32 s36, s31, 2\ns_and_b32 s36, s36, 3\ns_add_u32 s35, s35, s36")
    e("s_lshr_b32 s36, s33, 1\ns_and_b32 s37, s33, 1")
    L = f"v{vLane}"
    T = [f"v{t}" for t in vT]
    e(f"s_lshl_b32 s38, s34, 19")
    e(f"s_mul_i32 s39, s33, {8*nAi*2048}\ns_add_u32 s39, s39, s38")
    e(f"v_lshrrev_b32 {T[0]}, 3, {L}")
    e(f"v_lshrrev_b32 {T[1]}, 4, {L}")
    e(f"v_and_b32 {T[2]}, 7, {L}")
    e(f"v_xor_b32 {T[3]}, {T[2]}, {T[1]}")
    e(f"v_xor_b32 {T[4]}, 4, {T[3]}")
    e(f"v_lshlrev_b32 {T[0]}, 11, {T[0]}")
    e(f"v_lshl_add_u32 {T[3]}, {T[3]}, 4, {T[0]}\nv_lshl_add_u32 {T[4]}, {T[4]}, 4, {T[0]}")
    half = nAi // 2
    for i in range(nAi):
        e(f"s_add_u32 s40, s39, {i*8*2048 - (i % half)*1024}")
        e(f"v_add_u32 v{vDA[i]}, s40, {T[3 + (i & 1)]}")
    e(f"v_and_b32 {T[0]}, 15, {L}\nv_lshrrev_b32 {T[1]}, 4, {L}\nv_lshrrev_b32 {T[2]}, 1, {T[0]}")
    e(f"v_xor_b32 {T[3]}, {T[1]}, {T[2]}\nv_xor_b32 {T[4]}, 4, {T[3]}")
    e(f"v_lshlrev_b32 {T[3]}, 4, {T[3]}\nv_lshlrev_b32 {T[4]}, 4, {T[4]}")
    e(f"s_mul_i32 s40, s36, {MT*2048}")
    e(f"v_lshl_add_u32 {T[5]}, {T[0]}, 7, s40")
    e(f"v_add_u32 v{vAb[0]}, {T[5]}, {T[3]}\nv_add_u32 v{vAb[1]}, {T[5]}, {T[4]}")
    hr = 16 // NW
    lgh = 2 if NW == 4 else 1
    e(f"v_lshrrev_b32 {T[6]}, {lgh}, {T[0]}\nv_lshlrev_b32 {T[6]}, 10, {T[6]}\nv_and_b32 {T[7]}, {hr-1}, {T[0]}\nv_lshl_add_u32 {T[6]}, {T[7]}, 7, {T[6]}")
    e(f"v_add_u32 {T[6]}, 0x8000, {T[6]}")
    e(f"v_subrev_u32 {T[5]}, 2048, {T[5]}")
    e(f"s_cmp_eq_u32 s36, 0\ns_cselect_b64 vcc, -1, 0")
    e(f"v_cndmask_b32 {T[5]}, {T[5]}, {T[6]}, vcc")
    e(f"v_add_u32 v{vHb[0]}, {T[5]}, {T[3]}\nv_add_u32 v{vHb[1]}, {T[5]}, {T[4]}")
    e(f"v_lshrrev_b32 {T[0]}, 3, {L}\ns_mul_i32 s40, s33, {hr}\nv_add_u32 {T[0]}, s40, {T[0]}")
    e(f"v_lshrrev_b32 {T[1]}, 1, {T[0]}\nv_and_b32 {T[1]}, 7, {T[1]}\nv_and_b32 {T[2]}, 7, {L}\nv_xor_b32 {T[1]}, {T[1]}, {T[2]}")
    e(f"s_lshl_b32 s40, s34, 8\ns_sub_i32 s40, s40, 16\nv_add_u32 {T[0]}, s40, {T[0]}\nv_max_i32 {T[0]}, 0, {T[0]}")
    e(f"v_lshlrev_b32 {T[0]}, 11, {T[0]}\nv_lshl_add_u32 {T[0]}, {T[1]}, 4, {T[0]}")
    e(f"v_mov_b32 {T[2]}, 0x80000000\nv_cmp_gt_u32 vcc, {8*hr}, {L}\nv_cndmask_b32 v{vDH}, {T[2]}, {T[0]}, vcc")
    e("s_waitcnt lgkmcnt(0)")
    ts_stamp(k, 2, TS)
    e("s_mov_b32 s12, s4\ns_mov_b32 s13, s5\ns_mov_b32 s14, 0x400000\ns_mov_b32 s15, 0x20000")
    e("s_mov_b32 s20, s28\ns_mov_b32 s21, s29\ns_mov_b32 s22, 0x10000000\ns_mov_b32 s23, 0x20000")
    e("s_mov_b32 s24, s10\ns_mov_b32 s25, s11\ns_mov_b32 s26, 2048\ns_mov_b32 s27, 0x20000")
    RG = 8 // NW
    e(f"v_lshlrev_b32 v1, 5, {L}")
    e(f"s_lshl_b32 s40, s2, 14\ns_mul_i32 s41, s33, {RG*2048}\ns_add_u32 s40, s40, s41")
    e("buffer_load_dwordx4 v[8:11], v1, s[24:27], 0 offen\nbuffer_load_dwordx4 v[12:15], v1, s[24:27], 0 offen offset:16")
    for r in range(RG):
        e(f"buffer_load_dwordx4 v[{16+8*r}:{19+8*r}], v1, s[12:15], s40 offen offset:{r*2048}\nbuffer_load_dwordx4 v[{20+8*r}:{23+8*r}], v1, s[12:15], s40 offen offset:{r*2048+16}")
    if opt.get("only") == "h": e("s_branch L1_h")
    elif opt.get("only") != "q": e("s_cmp_ge_u32 s31, 16\ns_cbranch_scc1 L1_h")

    def gate_compute(nout):
        e(f"s_waitcnt vmcnt({nout})")
        e("s_mov_b32 s40, 0xffff0000\ns_mov_b32 s41, 0x3f803f80")
        for q in range(8):
            e(f"v_lshlrev_b32 v{32+2*q}, 16, v{8+q}\nv_and_b32 v{33+2*q}, s40, v{8+q}")
        for r in range(RG):
            e(f"v_mov_b32 v{4+r}, 0")
        for q in range(8):
            for r in range(RG):
                t = 48 + 4 * r
                e(f"v_lshlrev_b32 v{t}, 16, v{16+8*r+q}\nv_and_b32 v{t+1}, s40, v{16+8*r+q}")
                e(f"v_pk_mul_f32 v[{t}:{t+1}], v[{t}:{t+1}], v[{32+2*q}:{33+2*q}]")
                e(f"v_cvt_pk_bf16_f32 v{t+2}, v{t}, v{t+1}")
                e(f"v_dot2_f32_bf16 v{4+r}, v{t+2}, s41, v{4+r}")
        for sh in (8, 4, 2, 1):
            for r in range(RG):
                e(f"v_add_f32_dpp v{4+r}, v{4+r}, v{4+r} row_ror:{sh} row_mask:0xf bank_mask:0xf")
        for sw in ("v_permlane16_swap_b32", "v_permlane32_swap_b32"):
            for r in range(RG):
                e(f"v_mov_b32 v{48+r}, v{4+r}")
            for r in range(RG):
                e(f"{sw} v{4+r}, v{48+r}")
            for r in range(RG):
                e(f"v_add_f32 v{4+r}, v{4+r}, v{48+r}")
        for r in range(RG):
            z = f"v{4+r}"; t = f"v{48+2*r}"; t2 = f"v{49+2*r}"
            e(f"v_cvt_pk_bf16_f32 {z}, {z}, {z}\nv_and_b32 {z}, s40, {z}")
            e(f"v_mul_f32 {z}, 0xbfb8aa3b, {z}\nv_exp_f32 {z}, {z}\nv_add_f32 {z}, 1.0, {z}\nv_rcp_f32 {z}, {z}")
            e(f"v_cvt_pk_bf16_f32 {z}, {z}, {z}\nv_and_b32 {t}, s40, {z}")
            e(f"v_sub_f32 {z}, 1.0, {t}\nv_cvt_pk_bf16_f32 {z}, {z}, {z}\nv_and_b32 {t2}, s40, {z}")
        e(f"s_lshl_b32 s40, s2, 6\ns_mul_i32 s41, s33, {RG*8}\ns_add_u32 s40, s40, s41\ns_add_u32 s40, s40, {WS_GATE}")
        e("v_mov_b32 v2, 0\nv_mov_b32 v3, 0\ns_mov_b64 exec, 1")
        if RG == 2:
            e("buffer_store_dwordx4 v[48:51], v2, s[20:23], s40 offen")
        else:
            e("buffer_store_dwordx2 v[48:49], v2, s[20:23], s40 offen")
        e(f"s_lshl_b32 s41, s2, 8\ns_add_u32 s41, s41, {WS_FLAG}")
        e("buffer_store_dword v3, v2, s[20:23], s41 offen")
        e("s_mov_b64 exec, -1")

    def body(typ):
        q = typ == "q"
        P = "L1" + typ
        rowstride = 6144 if q else 7168
        ASLOT = 32768 + (NW * 1024 if q else 0)
        if q:
            nb = 3 if NW == 4 else 2
            BG = 12288 if NW == 4 else 16384
            wpart = BG // NW
        else:
            nb = nBi; BG = 16384; wpart = BG // NW
        ABASE = 4 * BG
        assert ABASE + 3 * ASLOT <= 163840
        rows_w = 32 // NW
        cpr = 24 if q else 28
        if q: e("s_mov_b32 s16, s6\ns_mov_b32 s17, s7\ns_mov_b32 s18, 0x600000\ns_mov_b32 s19, 0x20000")
        else: e("s_mov_b32 s16, s8\ns_mov_b32 s17, s9\ns_mov_b32 s18, 0x700000\ns_mov_b32 s19, 0x20000")
        magic = {24: 2731, 28: 2341}[cpr]
        for qq in range(256): assert (qq * magic) >> 16 == qq // cpr
        e(f"s_mul_i32 s40, s33, {rows_w}")
        e(f"s_mul_i32 s41, s35, {128 if q else 448}")
        e(f"s_mov_b32 s42, {rowstride}")
        for i in range(nb):
            e(f"v_add_u32 {T[0]}, {64*i}, {L}")
            e(f"v_mul_u32_u24 {T[1]}, {magic}, {T[0]}\nv_lshrrev_b32 {T[1]}, 16, {T[1]}")
            e(f"v_mul_u32_u24 {T[2]}, {cpr}, {T[1]}\nv_sub_u32 {T[2]}, {T[0]}, {T[2]}")
            e(f"v_add_u32 {T[1]}, s40, {T[1]}")
            if q:
                e(f"v_and_b32 {T[3]}, 2, {T[1]}\nv_lshrrev_b32 {T[4]}, 1, {T[1]}\nv_and_b32 {T[4]}, 4, {T[4]}\nv_or_b32 {T[3]}, {T[3]}, {T[4]}")
                e(f"v_xor_b32 {T[2]}, {T[2]}, {T[3]}")
                e(f"v_lshrrev_b32 {T[3]}, 3, {T[2]}\nv_and_b32 {T[4]}, 7, {T[2]}\nv_lshlrev_b32 {T[3]}, 11, {T[3]}\nv_lshl_add_u32 {T[2]}, {T[4]}, 4, {T[3]}")
            else:
                e(f"v_lshrrev_b32 {T[3]}, 2, {T[1]}\nv_and_b32 {T[3]}, 2, {T[3]}\nv_xor_b32 {T[2]}, {T[2]}, {T[3]}\nv_lshlrev_b32 {T[2]}, 4, {T[2]}")
            e(f"v_mul_lo_u32 {T[1]}, {T[1]}, s42\nv_add3_u32 {T[1]}, {T[1]}, {T[2]}, s41")
            if i: e(f"v_subrev_u32 {T[1]}, {1024*i}, {T[1]}")
            nvalid = rows_w * cpr - 64 * i
            if nvalid < 64:
                e(f"v_mov_b32 {T[2]}, 0x80000000\nv_cmp_gt_u32 vcc, {nvalid}, {L}\nv_cndmask_b32 v{vDB[i]}, {T[2]}, {T[1]}, vcc")
            else:
                e(f"v_mov_b32 v{vDB[i]}, {T[1]}")
        rowb = cpr * 16
        def rowaddr(kk): return (kk // rows_w) * wpart + (kk % rows_w) * rowb
        g_stride = rowaddr(8); second = rowaddr(4)
        for kk in range(32): assert rowaddr(kk) == (kk >> 3) * g_stride + ((kk >> 2) & 1) * second + (kk & 3) * rowb
        e(f"v_lshrrev_b32 {T[0]}, 4, {L}\nv_bfe_u32 {T[1]}, {L}, 2, 2\nv_and_b32 {T[2]}, 3, {L}")
        e(f"v_mul_u32_u24 {T[3]}, {g_stride}, {T[0]}\nv_mul_u32_u24 {T[4]}, {rowb}, {T[1]}\nv_add_u32 {T[3]}, {T[3]}, {T[4]}\nv_lshl_add_u32 {T[3]}, {T[2]}, 3, {T[3]}")
        if q:
            e(f"v_lshrrev_b32 {T[4]}, 1, {T[1]}\nv_and_b32 {T[5]}, 1, {T[0]}\nv_lshl_or_b32 {T[4]}, {T[5]}, 1, {T[4]}")
            e(f"s_lshl_b32 s40, s37, 1")
            for t in range(2):
                e(f"s_add_u32 s41, s40, {t}\nv_xor_b32 {T[5]}, s41, {T[4]}\nv_lshl_add_u32 v{vB[t]}, {T[5]}, 5, {T[3]}")
        else:
            e(f"v_and_b32 {T[4]}, 1, {T[0]}")
            e(f"s_lshl_b32 s40, s37, 3")
            for t in range(2):
                e(f"s_add_u32 s41, s40, {t}\nv_xor_b32 {T[5]}, s41, {T[4]}\nv_lshl_add_u32 v{vB[t]}, {T[5]}, 5, {T[3]}")
            e(f"s_add_u32 s41, s37, 6\nv_xor_b32 {T[5]}, s41, {T[4]}\nv_lshl_add_u32 v{vB[2]}, {T[5]}, 5, {T[3]}")
        sBw = 44
        sAw = 45
        sHw = 46
        sCur, sNext, sNext2, sDma, sKA, sKB, sIt = 47, 48, 49, 50, 51, 52, 53
        e(f"s_mul_i32 s{sBw}, s33, {wpart}\ns_mul_i32 s{sAw}, s33, {nAi*1024}\ns_lshl_b32 s{sHw}, s33, 10\ns_add_u32 s{sHw}, s{sHw}, 32768")
        def dmaA(hf, base_s, base_imm):
            G = []
            for i in range(half):
                ii = hf * half + i
                pre = [f"s_add_u32 m0, s{base_s}, {base_imm + hf*half*1024}"] if i == 0 else []
                G.append((pre, [f"buffer_load_dwordx4 v{vDA[ii]}, s[12:15], s{sKA} offen offset:{i*1024} lds"]))
            return G
        def dmaH(base_s, base_imm):
            return [([f"s_add_u32 m0, s{base_s}, {base_imm}"], [f"buffer_load_dwordx4 v{vDH}, s[12:15], s{sKA} offen lds"])]
        def dmaB(slot):
            G = []
            for i in range(nb):
                pre = [f"s_add_u32 m0, s{sBw}, {slot*BG}"] if i == 0 else []
                G.append((pre, [f"buffer_load_dwordx4 v{vDB[i]}, s[16:19], s{sKB} offen offset:{i*1024} lds"]))
            return G
        def flat(G):
            o = []
            for pre, ld in G: o += pre + ld
            return o
        e(f"s_mov_b32 s{sKA}, 0\ns_mov_b32 s{sKB}, 0")
        def A(t, hf):
            o = flat(dmaA(hf, sAw, ABASE + t * ASLOT))
            if q and hf == 1: o += flat(dmaH(sHw, ABASE + t * ASLOT))
            return o
        stepB = f"s_add_u32 s{sKB}, s{sKB}, {32*rowstride}"
        stepA = f"s_add_u32 s{sKA}, s{sKA}, 128"
        e(A(0, 0) + A(0, 1) + flat(dmaB(0)))
        ts_stamp(k, 3, TS)
        e([stepB, stepA] + A(1, 0) + flat(dmaB(1)) + [stepB] + A(1, 1) + flat(dmaB(2)) + [stepB, stepA] + A(2, 0) + flat(dmaB(3)) + [stepB])
        nodd = half + nb; neven = half + nb + (1 if q else 0)
        npro = half + 2 * neven + 2 * nodd
        ts_stamp(k, 4, TS)
        gate_compute(npro)
        ts_stamp(k, 5, TS)
        if opt.get("touch"):
            e(f"s_lshl_b32 s40, s34, 1\ns_add_u32 s40, s40, s36\ns_mul_i32 s40, s40, {144*8192}")
            e(f"v_lshlrev_b32 {T[0]}, 7, {L}")
            if q:
                e(f"s_lshl_b32 s41, s35, 1\ns_add_u32 s41, s41, s37\ns_lshl_b32 s41, s41, 13\ns_add_u32 s40, s40, s41")
                e(f"buffer_load_dword {T[1]}, {T[0]}, s[20:23], s40 offen {opt['touch']}")
            else:
                e(f"s_mul_i32 s41, s35, {7*8192}\ns_add_u32 s40, s40, s41\ns_mul_i32 s41, s37, {24576}\ns_add_u32 s40, s40, s41\ns_add_u32 s40, s40, {32*8192}")
                for i in range(4):
                    e(f"buffer_load_dword {T[1+i]}, {T[0]}, s[20:23], s40 offen {opt['touch']}\ns_add_u32 s40, s40, 8192")
        PF = opt.get("pf", True)
        if PF:
            e(f"s_mov_b32 s74, 0x200000\ns_mov_b32 s75, 0x20000\ns_mov_b32 s78, 0x700000\ns_mov_b32 s79, 0x20000\ns_mov_b32 s70, 0\ns_mov_b32 s71, 0")
            e(f"s_mul_i32 s40, s2, {NW}\ns_add_u32 s40, s40, s33\ns_mul_i32 s41, s40, {1024//NW}\ns_mul_i32 s42, s40, {3584//NW}")
            e(f"v_mov_b32 {T[2]}, 0x80000000\nv_lshlrev_b32 {T[0]}, 6, {L}")
            e(f"v_add_u32 {T[1]}, s41, {T[0]}\nv_cmp_gt_u32 vcc, {16//NW}, {L}\nv_cndmask_b32 v{vPF[0]}, {T[2]}, {T[1]}, vcc")
            e(f"v_add_u32 {T[1]}, s42, {T[0]}\nv_cmp_gt_u32 vcc, {56//NW}, {L}\nv_cndmask_b32 v{vPF[1]}, {T[2]}, {T[1]}, vcc")
        nacc = NACC_Q if q else NACC_H
        for r in range(nacc): e(f"v_mov_b32 v{r}, 0")
        e(f"s_mov_b32 s{sCur}, {ABASE}\ns_mov_b32 s{sNext}, {ABASE+ASLOT}\ns_mov_b32 s{sNext2}, {ABASE+2*ASLOT}")
        e(f"s_add_u32 s{sDma}, s{sAw}, {ABASE+2*ASLOT}\ns_add_u32 s54, s{sHw}, {ABASE+2*ASLOT}")
        for ks in range(2):
            e(f"v_add_u32 v{vAc[ks]}, {ABASE}, v{vAb[ks]}")
            if q: e(f"v_add_u32 v{vHc[ks]}, {ABASE}, v{vHb[ks]}")
        nA = MT + (1 if q else 0); nBf = 6 if q else 7
        def fA(s, i): return s * FR + 4 * i
        def fB(s, j): return s * FR + 4 * nA + 4 * j
        def reads(s, ks, slot):
            R = []
            Ar = []
            for i in range(MT): Ar.append(f"ds_read_b128 a[{fA(s,i)}:{fA(s,i)+3}], v{vAc[ks]} offset:{i*2048}")
            if q: Ar.append(f"ds_read_b128 a[{fA(s,MT)}:{fA(s,MT)+3}], v{vHc[ks]}")
            Br = []
            for j in range(nBf):
                if q: v, off = vB[j & 1], (j >> 1) * 128
                else: v, off = (vB[j & 1], (j >> 1) * 64) if j < 6 else (vB[2], 0)
                off += slot * BG
                Br.append(f"ds_read_b64_tr_b16 a[{fB(s,j)}:{fB(s,j)+1}], v{v} offset:{off}")
                Br.append(f"ds_read_b64_tr_b16 a[{fB(s,j)+2}:{fB(s,j)+3}], v{v} offset:{off+second}")
            while Ar or Br:
                if Br: R.append(Br.pop(0))
                if Br: R.append(Br.pop(0))
                if Ar: R.append(Ar.pop(0))
            return R
        if q:
            accQ = lambda mt, t: (mt * 2 + t) * 4
            accK = lambda m1, t: MT * 8 + (m1 * 2 + t) * 4
            accV = lambda m1, t: MT * 8 + (MT + 1) * 8 + (t * (MT + 1) + m1) * 4
        else:
            accH = lambda mt, j: (mt * 7 + j) * 4
        def mfmas(s):
            M = []
            def mm(d, a, b): M.append(f"v_mfma_f32_16x16x32_bf16 v[{d}:{d+3}], a[{a}:{a+3}], a[{b}:{b+3}], v[{d}:{d+3}]")
            if q:
                for m1 in range(MT + 1):
                    x = fA(s, m1 - 1) if m1 else fA(s, MT)
                    for t in range(2):
                        if m1: mm(accQ(m1 - 1, t), fB(s, t), x)
                    for t in range(2): mm(accK(m1, t), fB(s, 2 + t), x)
                    for t in range(2): mm(accV(m1, t), x, fB(s, 4 + t))
            else:
                for mt in range(MT):
                    for j in range(7): mm(accH(mt, j), fB(s, j), fA(s, mt))
            return M
        e(f"s_waitcnt vmcnt({npro - half - neven})\ns_barrier")
        ts_stamp(k, 6, TS)
        e(reads(0, 0, 0))
        e(f"s_mov_b32 s{sIt}, 8")
        e(".p2align 6")
        k.label(P + "_loop")
        for u in range(4):
            e(f"s_waitcnt lgkmcnt(0)\ns_waitcnt vmcnt({nodd + neven + (2 if PF and u in (1, 2) else 0)})\ns_barrier")
            M = mfmas(u & 1)
            n = len(M)
            pre = []
            if u & 1:
                for ks in range(2):
                    pre.append(f"v_add_u32 v{vAc[ks]}, s{sNext}, v{vAb[ks]}")
                    if q: pre.append(f"v_add_u32 v{vHc[ks]}, s{sNext}, v{vHb[ks]}")
                pre += [f"s_add_u32 s{sDma}, s{sCur}, s{sAw}", f"s_add_u32 s54, s{sCur}, s{sHw}", stepA,
                        f"s_cmp_lt_u32 s{sKA}, 2048", "s_cselect_b32 s14, 0x400000, 0",
                        f"s_mov_b32 s55, s{sCur}", f"s_mov_b32 s{sCur}, s{sNext}", f"s_mov_b32 s{sNext}, s{sNext2}", f"s_mov_b32 s{sNext2}, s55"]
                D = dmaA(0, sDma, 0) + dmaB(u)
            else:
                D = dmaA(1, sDma, 0) + (dmaH(54, 0) if q else []) + dmaB(u)
            R = reads((u + 1) & 1, (u + 1) & 1, (u + 1) % 4)
            slots = [[] for _ in range(n)]
            if opt.get("nomfma"): pass
            for i, p in enumerate(pre): slots[i // 3].append(p)
            r0 = opt.get("r0", 0); r1 = opt.get("r1", (n * 3) // 4)
            for i, r in enumerate(R):
                pos = r0 + (i * (r1 - r0)) // len(R)
                if i >= 2: pos = max(pos, 2 if (u & 1) else 0)
                slots[pos].append(r)
            d0 = opt.get("d0", 5 if NW == 4 else 4); d1 = opt.get("d1", n - 3)
            for i, (p, ld) in enumerate(D):
                pos = d0 + (i * (d1 - d0)) // len(D)
                slots[pos - 1] += p
                slots[pos] += ld
            slots[n - 1].append(stepB)
            if PF and u == 0:
                slots[1] += [f"buffer_load_dword {T[6]}, v{vPF[0]}, s[72:75], s70 offen", "s_add_u32 s70, s70, 262144"]
                slots[3] += [f"buffer_load_dword {T[7]}, v{vPF[1]}, s[76:79], s71 offen", "s_add_u32 s71, s71, 917504"]
            if u == 3: slots[n - 2] += [f"s_sub_u32 s{sIt}, s{sIt}, 1"]
            for i in range(n):
                if not opt.get("nomfma"): e(M[i])
                for x in slots[i]:
                    if opt.get("nods") and x.startswith("ds_"): continue
                    if opt.get("nodma") and x.startswith("buffer_"): continue
                    e(x)
        e(f"s_cmp_lg_u32 s{sIt}, 0\ns_cbranch_scc1 {P}_loop")
        e("s_waitcnt lgkmcnt(0)")
        ts_stamp(k, 7, TS)
        st = opt.get("st", "")
        e(f"v_lshlrev_b32 {T[0]}, 4, {L}")
        if NW == 4:
            e(f"s_lshl_b32 s40, s34, 1\ns_add_u32 s40, s40, s36\ns_mul_i32 s40, s40, {144*8192}")
        else:
            e(f"s_lshl_b32 s40, s34, 1\ns_lshr_b32 s41, s36, 1\ns_add_u32 s40, s40, s41\ns_mul_i32 s40, s40, {144*8192}\ns_and_b32 s41, s36, 1\ns_lshl_b32 s41, s41, 12\ns_add_u32 s40, s40, s41")
        if not q:
            e(f"s_mul_i32 s41, s35, {7*8192}\ns_add_u32 s40, s40, s41\ns_add_u32 s40, s40, {32*8192}")
            e(f"s_add_u32 s42, s40, {3*8192}\ns_lshl_b32 s41, s37, 3\ns_add_u32 s42, s42, s41")
            e(f"s_lshl_b32 s41, s37, 15\ns_add_u32 s40, s40, s41")
            for pr in range(3):
                for mt in range(MT):
                    a = accH(mt, 2 * pr); b = accH(mt, 2 * pr + 1)
                    e(f"v_cvt_pk_bf16_f32 v{a}, v{a}, v{a+1}\nv_cvt_pk_bf16_f32 v{a+1}, v{a+2}, v{a+3}\nv_cvt_pk_bf16_f32 v{a+2}, v{b}, v{b+1}\nv_cvt_pk_bf16_f32 v{a+3}, v{b+2}, v{b+3}")
                    for r in range(4): e(f"v_pk_max_i16 v{a+r}, v{a+r}, 0")
                    if mt % 4 == 0: e(f"s_add_u32 s43, s40, {pr*8192 + mt*1024}")
                    e(f"buffer_store_dwordx4 v[{a}:{a+3}], {T[0]}, s[20:23], s43 offen offset:{(mt%4)*1024} {st}")
            for mt in range(MT):
                a = accH(mt, 6)
                e(f"v_cvt_pk_bf16_f32 v{a}, v{a}, v{a+1}\nv_cvt_pk_bf16_f32 v{a+1}, v{a+2}, v{a+3}")
                for r in range(2): e(f"v_pk_max_i16 v{a+r}, v{a+r}, 0")
                if mt % 4 == 0: e(f"s_add_u32 s43, s42, {mt*1024}")
                e(f"buffer_store_dwordx2 v[{a}:{a+1}], {T[0]}, s[20:23], s43 offen offset:{(mt%4)*1024} {st}")
        else:
            e(f"s_lshl_b32 s41, s35, 1\ns_add_u32 s41, s41, s37\ns_lshl_b32 s41, s41, 13\ns_add_u32 s40, s40, s41")
            i_, g_ = T[1], T[2]
            e(f"v_and_b32 {i_}, 15, {L}\nv_lshrrev_b32 {g_}, 4, {L}")
            e(f"v_and_b32 {T[3]}, 1, {i_}\nv_cmp_eq_u32 s[56:57], 1, {T[3]}")
            e(f"v_lshl_add_u32 {T[4]}, {g_}, 2, {T[3]}")
            e(f"v_cmp_le_u32 s[58:59], {T[4]}, {i_}")
            e(f"v_add_u32 {T[4]}, 2, {T[4]}\nv_cmp_le_u32 s[60:61], {T[4]}, {i_}")
            e("s_or_b32 s41, s34, s36\ns_cmp_eq_u32 s41, 0\ns_cselect_b64 s[62:63], -1, 0")
            e("s_andn2_b64 s[64:65], s[62:63], s[58:59]\ns_andn2_b64 s[66:67], s[62:63], s[60:61]")
            sel = [vAb[0], vAb[1], vAc[0], vAc[1]]
            z_ = T[5]
            e(f"v_mov_b32 {z_}, 0x0c0c0c0c")
            e(f"v_mov_b32 {T[3]}, 0x0c0c0100\nv_mov_b32 {T[4]}, 0x01000c0c\nv_cndmask_b32 {T[6]}, {T[3]}, {T[4]}, s[56:57]")
            e(f"v_cndmask_b32 v{sel[0]}, {T[6]}, {z_}, s[58:59]\nv_cndmask_b32 v{sel[2]}, {z_}, {T[6]}, s[58:59]")
            e(f"v_mov_b32 {T[3]}, 0x0c0c0302\nv_mov_b32 {T[4]}, 0x03020c0c\nv_cndmask_b32 {T[6]}, {T[3]}, {T[4]}, s[56:57]")
            e(f"v_cndmask_b32 v{sel[1]}, {T[6]}, {z_}, s[60:61]\nv_cndmask_b32 v{sel[3]}, {z_}, {T[6]}, s[60:61]")
            e(f"s_mov_b32 s68, 0xffff0000\ns_mov_b32 s69, {SCALE}\ns_mov_b32 s70, {LOG2E}\nv_mov_b32 {z_}, {NEG}")
            def pack8(a, b):
                e(f"v_cvt_pk_bf16_f32 v{a}, v{a}, v{a+1}\nv_cvt_pk_bf16_f32 v{a+1}, v{a+2}, v{a+3}\nv_cvt_pk_bf16_f32 v{a+2}, v{b}, v{b+1}\nv_cvt_pk_bf16_f32 v{a+3}, v{b+2}, v{b+3}")
            for m1 in range(MT + 1): pack8(accK(m1, 0), accK(m1, 1))
            for mt in range(MT): pack8(accQ(mt, 0), accQ(mt, 1))
            for mt in range(MT):
                sp, sc = accQ(mt, 1), accK(mt + 1, 1)
                qf = accQ(mt, 0)
                e(f"v_mfma_f32_16x16x32_bf16 v[{sp}:{sp+3}], v[{accK(mt,0)}:{accK(mt,0)+3}], v[{qf}:{qf+3}], 0")
                e(f"v_mfma_f32_16x16x32_bf16 v[{sc}:{sc+3}], v[{accK(mt+1,0)}:{accK(mt+1,0)+3}], v[{qf}:{qf+3}], 0")
            Vh = lambda m1, t: accV(0, t) + 2 * m1
            for t in range(2):
                for m1 in range(MT + 1):
                    a = accV(m1, t); d = Vh(m1, t)
                    e(f"v_cvt_pk_bf16_f32 v{d}, v{a}, v{a+1}\nv_cvt_pk_bf16_f32 v{d+1}, v{a+2}, v{a+3}")
            def each(f):
                for mt in range(MT): e(f(mt, accQ(mt, 1), accK(mt + 1, 1)))
            each(lambda mt, p, c: f"v_cndmask_b32 v{p}, v{p}, v{p+1}, s[56:57]\nv_cndmask_b32 v{p+1}, v{p+2}, v{p+3}, s[56:57]\n"
                                  f"v_cndmask_b32 v{c}, v{c}, v{c+1}, s[56:57]\nv_cndmask_b32 v{c+1}, v{c+2}, v{c+3}, s[56:57]")
            each(lambda mt, p, c: f"v_cndmask_b32 v{p}, v{p}, v{c}, s[58:59]\nv_cndmask_b32 v{p+1}, v{p+1}, v{c+1}, s[60:61]")
            each(lambda mt, p, c: f"v_cvt_pk_bf16_f32 v{c}, v{p}, v{p+1}")
            each(lambda mt, p, c: f"v_lshlrev_b32 v{p}, 16, v{c}\nv_and_b32 v{p+1}, s68, v{c}")
            each(lambda mt, p, c: f"v_mul_f32 v{p}, s69, v{p}\nv_mul_f32 v{p+1}, s69, v{p+1}")
            each(lambda mt, p, c: f"v_cvt_pk_bf16_f32 v{c}, v{p}, v{p+1}")
            each(lambda mt, p, c: f"v_lshlrev_b32 v{p}, 16, v{c}\nv_and_b32 v{p+1}, s68, v{c}")
            p0 = accQ(0, 1)
            e(f"v_cndmask_b32 v{p0}, v{p0}, {z_}, s[64:65]\nv_cndmask_b32 v{p0+1}, v{p0+1}, {z_}, s[66:67]")
            each(lambda mt, p, c: f"v_max_f32 v{c}, v{p}, v{p+1}")
            for sw in ("v_permlane16_swap_b32", "v_permlane32_swap_b32"):
                each(lambda mt, p, c: f"v_mov_b32 v{c+1}, v{c}")
                each(lambda mt, p, c: f"{sw} v{c}, v{c+1}")
                each(lambda mt, p, c: f"v_max_f32 v{c}, v{c}, v{c+1}")
            each(lambda mt, p, c: f"v_sub_f32 v{p}, v{p}, v{c}\nv_sub_f32 v{p+1}, v{p+1}, v{c}")
            each(lambda mt, p, c: f"v_mul_f32 v{p}, s70, v{p}\nv_mul_f32 v{p+1}, s70, v{p+1}")
            each(lambda mt, p, c: f"v_exp_f32 v{p}, v{p}\nv_exp_f32 v{p+1}, v{p+1}")
            each(lambda mt, p, c: f"v_add_f32 v{c}, v{p}, v{p+1}")
            for sw in ("v_permlane16_swap_b32", "v_permlane32_swap_b32"):
                each(lambda mt, p, c: f"v_mov_b32 v{c+1}, v{c}")
                each(lambda mt, p, c: f"{sw} v{c}, v{c+1}")
                each(lambda mt, p, c: f"v_add_f32 v{c}, v{c}, v{c+1}")
            each(lambda mt, p, c: f"v_rcp_f32 v{c}, v{c}")
            each(lambda mt, p, c: f"v_mul_f32 v{p}, v{p}, v{c}\nv_mul_f32 v{p+1}, v{p+1}, v{c}")
            each(lambda mt, p, c: f"v_cvt_pk_bf16_f32 v{c}, v{p}, v{p+1}")
            each(lambda mt, p, c: "\n".join(f"v_perm_b32 v{p+r}, v{c}, v{c}, v{sel[r]}" for r in range(4)))
            for mt in range(MT):
                p = accQ(mt, 1)
                for t in range(2):
                    d = accQ(mt, 0) if t == 0 else accK(mt + 1, 1)
                    e(f"v_mfma_f32_16x16x32_bf16 v[{d}:{d+3}], v[{Vh(mt,t)}:{Vh(mt,t)+3}], v[{p}:{p+3}], 0")
            for mt in range(MT):
                a = accQ(mt, 0); pack8(a, accK(mt + 1, 1))
                if mt % 4 == 0: e(f"s_add_u32 s43, s40, {mt*1024}")
                e(f"buffer_store_dwordx4 v[{a}:{a+3}], {T[0]}, s[20:23], s43 offen offset:{(mt%4)*1024} {st}")
        ts_stamp(k, 8, TS)
        if TS: e("s_waitcnt vmcnt(0)")
        ts_stamp(k, 9, TS); ts_real(k, 10, TS)
        ts_store(k, 11, TS, 20, 33)
    if opt.get("only") != "h": body("q")
    e("s_endpgm")
    k.label("L1_h")
    body("h")
    k.label("L1_end")
    return k

if __name__ == "__main__":
    write_file(f"s1_w4.s", [gen_stage1(4)])
    write_file(f"s1_w4_ts.s", [gen_stage1(4, dict(ts=1))])
    write_file(f"s1_w8h_ts.s", [gen_stage1(8, dict(only="h", ts=1))])
    write_file(f"s1_w4h_nodma.s", [gen_stage1(4, dict(only="h", nodma=1, ts=1))])
    write_file(f"s1_w4h_nods.s", [gen_stage1(4, dict(only="h", nodma=1, nods=1, ts=1))])
    write_file(f"s1_w4h_nomfma.s", [gen_stage1(4, dict(only="h", nomfma=1, ts=1))])
```

```python
from asmlib import *
from gen1 import WS_A2, WS_GATE, WS_FLAG, WS_PART, Alloc

def gen_stage2(opt=None):
    opt = opt or {}
    N1 = opt.get("n1", 64)
    NS = 8; SLOT = 16384
    TS = opt.get("ts", False)
    va = Alloc(0)
    accA = va.get(64); accB = va.get(64)
    vLane = va.get()
    vAr = [va.get(), va.get()]
    vBr = [[va.get() for _ in range(4)] for _ in range(2)]
    vDA = va.get(); vDB = [va.get(), va.get()]
    vG = va.get(8, 2)
    vT = [va.get() for _ in range(8)]
    vP = va.get(64, 4)
    NV = va.n
    k = K("s2_kernel", 256, 256, NS * SLOT, vgpr=NV, agpr=64)
    e = k.e
    L = f"v{vLane}"; T = [f"v{t}" for t in vT]
    e("s_cmp_ge_u32 s2, 256\ns_cbranch_scc1 L2_end")
    ts_real(k, 0, TS); ts_stamp(k, 1, TS)
    e("s_load_dwordx2 s[4:5], s[0:1], 16\ns_load_dwordx2 s[6:7], s[0:1], 40\ns_load_dwordx2 s[8:9], s[0:1], 56\ns_load_dwordx2 s[28:29], s[0:1], 72")
    e(f"v_and_b32 {L}, 63, v0\nv_lshrrev_b32 v1, 6, v0")
    e("s_and_b32 s30, s2, 7\ns_lshr_b32 s31, s2, 3")
    e("v_readfirstlane_b32 s33, v1")
    e("s_and_b32 s32, s30, 1")
    if opt.get("map", "4x8") == "4x8":
        e("s_lshr_b32 s34, s30, 1\ns_lshl_b32 s34, s34, 2\ns_lshr_b32 s35, s31, 3\ns_add_u32 s34, s34, s35")
        e("s_and_b32 s35, s31, 7")
    else:
        e("s_lshr_b32 s34, s30, 2\ns_lshl_b32 s34, s34, 3\ns_lshr_b32 s35, s31, 2\ns_add_u32 s34, s34, s35")
        e("s_and_b32 s35, s30, 2\ns_lshl_b32 s35, s35, 1\ns_and_b32 s36, s31, 3\ns_add_u32 s35, s35, s36")
    e("s_lshr_b32 s36, s33, 1\ns_and_b32 s37, s33, 1")
    e(f"s_lshl_b32 s40, s33, 11\nv_lshl_add_u32 v{vDA}, {L}, 4, s40")
    e(f"v_lshrrev_b32 {T[0]}, 4, {L}\nv_and_b32 {T[1]}, 15, {L}")
    e(f"s_lshl_b32 s41, s33, 14\ns_lshl_b32 s42, s35, 8\ns_add_u32 s41, s41, s42")
    for i in range(2):
        e(f"v_lshl_add_u32 {T[2]}, {T[0]}, 1, {8*i}\nv_xor_b32 {T[2]}, {T[2]}, {T[1]}\nv_lshlrev_b32 {T[2]}, 4, {T[2]}")
        e(f"v_lshl_add_u32 {T[2]}, {T[0]}, 11, {T[2]}\ns_add_u32 s42, s41, {i*8192 + 4096 - 2048 - 1024*i}\nv_add_u32 v{vDB[i]}, s42, {T[2]}")
    sW = 44; sKA = 45; sKB = 46; sIt = 47
    e(f"s_lshl_b32 s{sW}, s33, 12")
    e(f"s_mul_i32 s{sKA}, s34, {144*8192}")
    e("s_waitcnt lgkmcnt(0)")
    ts_stamp(k, 2, TS)
    e("s_mov_b32 s12, s28\ns_mov_b32 s13, s29\ns_mov_b32 s15, 0x20000")
    e("s_sub_u32 s48, s6, 4096\ns_subb_u32 s49, s7, 0")
    e("s_sub_u32 s16, s4, 4096\ns_subb_u32 s17, s5, 0\ns_mov_b32 s19, 0x20000")
    e(f"s_add_u32 s14, s{sKA}, {144*8192}\ns_mov_b32 s18, {0x200000+4096}\ns_mov_b32 s{sKB}, 0")
    e("s_cmp_eq_u32 s32, 0\ns_cbranch_scc1 L2_isF")
    e(f"s_mov_b32 s16, s48\ns_mov_b32 s17, s49\ns_mov_b32 s18, {N1*65536+4096}")
    e(f"s_add_u32 s{sKA}, s{sKA}, {32*8192}\ns_add_u32 s14, s{sKA}, {N1*8192}")
    k.label("L2_isF")
    aux = opt.get("aux", "")
    def dma(slot):
        return [([f"s_add_u32 m0, s{sW}, {slot*SLOT}"], [f"buffer_load_dwordx4 v{vDA}, s[12:15], s{sKA} offen {aux} lds"]),
                ([], [f"buffer_load_dwordx4 v{vDA}, s[12:15], s{sKA} offen offset:1024 {aux} lds"]),
                ([], [f"buffer_load_dwordx4 v{vDB[0]}, s[16:19], s{sKB} offen offset:2048 {aux} lds"]),
                ([], [f"buffer_load_dwordx4 v{vDB[1]}, s[16:19], s{sKB} offen offset:3072 {aux} lds",
                      f"s_add_u32 s{sKA}, s{sKA}, {0 if opt.get('wrapA') else 8192}", f"s_add_u32 s{sKB}, s{sKB}, {0 if opt.get('wrapB') else 65536}"])]
    for j in range(7):
        for p, l in dma(j): e(p + l)
        if j == 0: ts_stamp(k, 3, TS)
    ts_stamp(k, 4, TS)
    e("s_mov_b32 s20, s28\ns_mov_b32 s21, s29\ns_mov_b32 s22, 0x10000000\ns_mov_b32 s23, 0x20000")
    e("s_mov_b32 s24, s8\ns_mov_b32 s25, s9\ns_mov_b32 s26, 0x400000\ns_mov_b32 s27, 0x20000")
    e(f"v_lshlrev_b32 {T[2]}, 3, {T[1]}\ns_lshl_b32 s40, s34, 10\ns_lshl_b32 s41, s36, 9\ns_add_u32 s40, s40, s41\ns_add_u32 s40, s40, {WS_GATE}")
    for mt in range(4):
        e(f"buffer_load_dwordx2 v[{vG+2*mt}:{vG+2*mt+1}], {T[2]}, s[20:23], s40 offen offset:{mt*128}")
    e(f"s_lshl_b32 s40, s36, 13\nv_lshl_add_u32 v{vAr[0]}, {L}, 4, s40\nv_add_u32 v{vAr[1]}, 0x10000, v{vAr[0]}")
    e(f"v_bfe_u32 {T[2]}, {L}, 2, 2\nv_and_b32 {T[3]}, 3, {L}\nv_and_b32 {T[4]}, 1, {T[0]}\nv_lshrrev_b32 {T[5]}, 1, {T[0]}")
    e(f"v_lshlrev_b32 {T[5]}, 12, {T[5]}\nv_lshl_add_u32 {T[5]}, {T[4]}, 10, {T[5]}\nv_lshl_add_u32 {T[5]}, {T[2]}, 8, {T[5]}\nv_lshl_add_u32 {T[5]}, {T[3]}, 3, {T[5]}\nv_add_u32 {T[5]}, 2048, {T[5]}")
    e(f"v_lshl_add_u32 {T[4]}, {T[4]}, 2, {T[2]}\ns_lshl_b32 s40, s37, 2")
    for j in range(4):
        e(f"s_add_u32 s41, s40, {j}\nv_xor_b32 {T[6]}, s41, {T[4]}\nv_lshl_add_u32 v{vBr[0][j]}, {T[6]}, 5, {T[5]}\nv_add_u32 v{vBr[1][j]}, 0x10000, v{vBr[0][j]}")
    for r in range(128): e(f"v_mov_b32 v{r}, 0")
    fA = lambda s, i: s * 32 + 4 * i
    fB = lambda s, j: s * 32 + 16 + 4 * j
    def reads(s, slot):
        w = slot // 4; o = (slot % 4) * SLOT
        R = []
        for i in range(4):
            R.append(f"ds_read_b64_tr_b16 a[{fB(s,i)}:{fB(s,i)+1}], v{vBr[w][i]} offset:{o}")
            R.append(f"ds_read_b64_tr_b16 a[{fB(s,i)+2}:{fB(s,i)+3}], v{vBr[w][i]} offset:{o+8192}")
            R.append(f"ds_read_b128 a[{fA(s,i)}:{fA(s,i)+3}], v{vAr[w]} offset:{o + (i>>1)*4096 + (i&1)*1024}")
        return R
    def mfmas(acc, s):
        return [f"v_mfma_f32_16x16x32_bf16 v[{acc+(mt*4+j)*4}:{acc+(mt*4+j)*4+3}], a[{fB(s,j)}:{fB(s,j)+3}], a[{fA(s,mt)}:{fA(s,mt)+3}], v[{acc+(mt*4+j)*4}:{acc+(mt*4+j)*4+3}]"
                for mt in range(4) for j in range(4)]
    def iteration(acc, switch=False, last=None):
        for u in range(8):
            e("s_waitcnt lgkmcnt(0)")
            if u % 2 == 0: e("s_waitcnt vmcnt(16)\ns_barrier")
            M = mfmas(acc, u & 1)
            slots = [[] for _ in range(16)]
            R = reads((u + 1) & 1, (u + 1) % 8)
            for i, r in enumerate(R): slots[i].append(r)
            D = dma((u + 7) % 8)
            for i, (p, l) in enumerate(D):
                pos = 2 + 3 * i
                slots[pos - 1] += p; slots[pos] += l
            if switch and u == 0:
                slots[12] += [f"s_mov_b32 s16, s48", "s_mov_b32 s17, s49", f"s_mov_b32 s18, {0x700000+4096}",
                              f"s_add_u32 s{sKA}, s{sKA}, {N1*8192}", f"s_mov_b32 s{sKB}, {N1*65536}"]
            if last and u == 7: slots[13] += [f"s_sub_u32 s{sIt}, s{sIt}, 1"]
            for i in range(16):
                if not opt.get("nomfma"): e(M[i])
                for x in slots[i]:
                    if opt.get("nods") and x.startswith("ds_"): continue
                    if opt.get("nodma") and x.startswith("buffer_"): continue
                    e(x)
        if last: e(f"s_cmp_lg_u32 s{sIt}, 0\ns_cbranch_scc1 {last}")
    e("s_waitcnt vmcnt(28)\ns_barrier")
    ts_stamp(k, 5, TS)
    e(reads(0, 0))
    e(f"s_mov_b32 s{sIt}, {N1//8}")
    e("s_cmp_lg_u32 s32, 0\ns_cbranch_scc1 L2_loopB")
    e(f"s_mov_b32 s{sIt}, 3")
    e(".p2align 6")
    k.label("L2_loopA")
    iteration(accA, last="L2_loopA")
    iteration(accA, switch=True)
    e(f"s_mov_b32 s{sIt}, {(112-N1)//8}")
    e(".p2align 6")
    k.label("L2_loopB")
    iteration(accB, last="L2_loopB")
    e("s_waitcnt lgkmcnt(0)")
    ts_stamp(k, 6, TS)
    e(f"s_lshl_b32 s40, s34, 3\ns_add_u32 s40, s40, s35")
    e(f"s_lshl_b32 s41, s40, 8\ns_add_u32 s41, s41, {WS_FLAG}")
    e(f"s_lshl_b32 s40, s40, 16\ns_lshl_b32 s42, s33, 14\ns_add_u32 s40, s40, s42\ns_add_u32 s40, s40, {WS_PART}")
    e(f"v_lshlrev_b32 {T[0]}, 4, {L}\nv_mov_b32 {T[1]}, 0")
    e("s_cmp_eq_u32 s32, 0\ns_cbranch_scc1 L2_fin")
    for r in range(16):
        e(f"buffer_store_dwordx4 v[{accB+4*r}:{accB+4*r+3}], {T[0]}, s[20:23], s40 offen offset:{(r%4)*1024} sc0 sc1")
        if r % 4 == 3: e("s_add_u32 s40, s40, 4096")
    e("s_waitcnt vmcnt(0)\ns_barrier")
    ts_stamp(k, 7, TS)
    e("s_cmp_lg_u32 s33, 0\ns_cbranch_scc1 L2_pdone")
    e(f"v_mov_b32 {T[2]}, 1\ns_mov_b64 exec, 1\nbuffer_store_dword {T[2]}, {T[1]}, s[20:23], s41 offen sc0 sc1\ns_mov_b64 exec, -1")
    k.label("L2_pdone")
    ts_stamp(k, 8, TS)
    if TS: e("s_waitcnt vmcnt(0)")
    ts_stamp(k, 9, TS); ts_real(k, 10, TS)
    ts_store(k, 11, TS, 20, 33, base=0x100000, tmp=(vT[6], vT[7]))
    e("s_endpgm")
    k.label("L2_fin")
    e("s_cmp_lg_u32 s33, 0\ns_cbranch_scc1 L2_got\ns_mov_b32 s43, 0")
    k.label("L2_poll")
    e(f"buffer_load_dword {T[2]}, {T[1]}, s[20:23], s41 offen sc0 sc1\ns_waitcnt vmcnt(0)\nv_readfirstlane_b32 s42, {T[2]}\ns_cmp_eq_u32 s42, 1\ns_cbranch_scc1 L2_got\ns_sleep 1\ns_add_u32 s43, s43, 1\ns_cmp_lt_u32 s43, 100000\ns_cbranch_scc1 L2_poll")
    k.label("L2_got")
    e("s_barrier")
    ts_stamp(k, 7, TS)
    for r in range(16):
        e(f"buffer_load_dwordx4 v[{vP+4*r}:{vP+4*r+3}], {T[0]}, s[20:23], s40 offen offset:{(r%4)*1024} sc0 sc1")
        if r % 4 == 3: e("s_add_u32 s40, s40, 4096")
    for mt in range(4):
        for r in range(16): e(f"v_mul_f32 v{accA+mt*16+r}, v{vG+2*mt}, v{accA+mt*16+r}")
    e(f"v_and_b32 {T[2]}, 15, {L}\nv_lshrrev_b32 {T[3]}, 4, {L}\nv_and_b32 {T[4]}, 1, {T[3]}\nv_lshrrev_b32 {T[3]}, 1, {T[3]}")
    e(f"v_lshlrev_b32 {T[2]}, 11, {T[2]}\nv_lshl_add_u32 {T[2]}, {T[4]}, 5, {T[2]}\nv_lshl_add_u32 {T[2]}, {T[3]}, 4, {T[2]}")
    e("s_lshl_b32 s42, s34, 18\ns_lshl_b32 s43, s36, 17\ns_add_u32 s42, s42, s43\ns_lshl_b32 s43, s35, 8\ns_add_u32 s42, s42, s43\ns_lshl_b32 s43, s37, 7\ns_add_u32 s42, s42, s43")
    for mt in range(4):
        e(f"s_waitcnt vmcnt({12 - 4*mt + 2*mt})")
        for r in range(16): e(f"v_add_f32 v{accB+mt*16+r}, v{accB+mt*16+r}, v{vP+mt*16+r}")
        for r in range(16): e(f"v_fma_f32 v{accA+mt*16+r}, v{vG+2*mt+1}, v{accB+mt*16+r}, v{accA+mt*16+r}")
        for pr in range(2):
            a = accA + mt * 16 + pr * 8
            e(f"v_cvt_pk_bf16_f32 v{a}, v{a}, v{a+1}\nv_cvt_pk_bf16_f32 v{a+1}, v{a+2}, v{a+3}\nv_cvt_pk_bf16_f32 v{a+2}, v{a+4}, v{a+5}\nv_cvt_pk_bf16_f32 v{a+3}, v{a+6}, v{a+7}")
        for pr in range(2):
            a = accA + mt * 16 + pr * 8
            e(f"v_permlane16_swap_b32 v{a}, v{a+2}\nv_permlane16_swap_b32 v{a+1}, v{a+3}")
        for pr in range(2):
            a = accA + mt * 16 + pr * 8
            e(f"buffer_store_dwordx4 v[{a}:{a+3}], {T[2]}, s[24:27], s42 offen offset:{pr*64}")
        e("s_add_u32 s42, s42, 32768")
    ts_stamp(k, 8, TS)
    if TS: e("s_waitcnt vmcnt(0)")
    ts_stamp(k, 9, TS); ts_real(k, 10, TS)
    ts_store(k, 11, TS, 20, 33, base=0x100000, tmp=(vT[6], vT[7]))
    k.label("L2_end")
    return k

if __name__ == "__main__":
    from gen1 import gen_stage1
    write_file("full.s", [gen_stage1(4), gen_stage2()])
    write_file("full_ts.s", [gen_stage1(4, dict(ts=1)), gen_stage2(dict(ts=1))])
    write_file("f_nopf.s", [gen_stage1(4, dict(ts=1, pf=0)), gen_stage2(dict(ts=1))])
    write_file("f_map.s", [gen_stage1(4, dict(ts=1)), gen_stage2(dict(ts=1, map="8x4"))])
```

```python
from asmlib import *

WS_A2 = 0
WS_GATE = 0x1200000
WS_FLAG = 0x1210000
WS_PART = 0x1400000
LOG2E = 0x3fb8aa3b
SCALE = 0x3e3504f3
NEG = 0xce6e6b28

class Alloc:
    def __init__(self, start): self.n = start
    def get(self, c=1, align=1):
        self.n = (self.n + align - 1) // align * align
        r = self.n; self.n += c; return r

class VM:
    def __init__(self): self.q = []
    def issue(self, tag): self.q.append(tag)
    def count(self, tags):
        idx = [i for i, t in enumerate(self.q) if t in tags]
        for t in tags: assert t in self.q, t
        return len(self.q) - 1 - max(idx)

def place(n, items, lo, hi):
    out = [[] for _ in range(n)]
    m = len(items)
    for i, it in enumerate(items):
        pos = lo + (i * (hi - lo + 1)) // m
        if isinstance(it, tuple):
            out[max(pos - 1, 0)] += it[0]
            out[pos] += it[1]
        else:
            out[pos] += it if isinstance(it, list) else [it]
    return out

def gen_stage1(opt=None):
    opt = opt or {}
    NW = 4; MT = 8
    NACC_H = 224; NACC_Q = 208
    va = Alloc(NACC_H)
    vLane = va.get(); vAb = [va.get(), va.get()]; vAc = [va.get(), va.get()]
    vh = Alloc(NACC_Q)
    vHb = [vh.get(), vh.get()]; vHc = [vh.get(), vh.get()]; vDH = vh.get()
    vB = [va.get(), va.get(), va.get()]
    vDA = [va.get() for _ in range(8)]
    vDB = [va.get() for _ in range(4)]
    vT = [va.get() for _ in range(12)]
    assert vT[0] % 2 == 0
    NV = va.n
    assert NV == 256
    FR = 60
    AG = 180
    k = K("s1_kernel", 256, 256, 163840, vgpr=NV, agpr=204)
    e = k.e
    TS = opt.get("ts", False)
    L = f"v{vLane}"; T = [f"v{t}" for t in vT]
    e("s_cmp_ge_u32 s2, 256\ns_cbranch_scc1 L1_end")
    ts_real(k, 0, TS); ts_stamp(k, 1, TS)
    e("s_load_dwordx4 s[4:7], s[0:1], 0\ns_load_dwordx4 s[8:11], s[0:1], 32\ns_load_dwordx2 s[24:25], s[0:1], 48\ns_load_dwordx2 s[20:21], s[0:1], 72\ns_load_dwordx2 s[72:73], s[0:1], 16")
    e(f"v_and_b32 {L}, 63, v0\nv_lshrrev_b32 v1, 6, v0")
    e("s_and_b32 s30, s2, 7\ns_lshr_b32 s31, s2, 3")
    e("v_readfirstlane_b32 s33, v1")
    e("s_lshr_b32 s34, s30, 2\ns_lshl_b32 s34, s34, 2\ns_and_b32 s35, s31, 3\ns_add_u32 s34, s34, s35")
    e("s_and_b32 s35, s30, 3\ns_lshl_b32 s35, s35, 2\ns_lshr_b32 s36, s31, 2\ns_and_b32 s36, s36, 3\ns_add_u32 s35, s35, s36")
    e("s_lshr_b32 s36, s33, 1\ns_and_b32 s37, s33, 1")
    e(f"s_lshl_b32 s38, s34, 19\ns_lshl_b32 s39, s33, 17\ns_add_u32 s39, s39, s38")
    e(f"v_lshrrev_b32 {T[0]}, 3, {L}\nv_lshrrev_b32 {T[1]}, 4, {L}\nv_and_b32 {T[2]}, 7, {L}")
    e(f"v_xor_b32 {T[3]}, {T[2]}, {T[1]}\nv_xor_b32 {T[4]}, 4, {T[3]}\nv_lshlrev_b32 {T[5]}, 11, {T[0]}")
    e(f"v_lshl_add_u32 {T[3]}, {T[3]}, 4, {T[5]}\nv_lshl_add_u32 {T[4]}, {T[4]}, 4, {T[5]}")
    for i in range(8):
        e(f"s_add_u32 s40, s39, {i*8*2048 - (i % 4)*1024}\nv_add_u32 v{vDA[i]}, s40, {T[3 + (i & 1)]}")
    sBw, sAw, sHw, sCur, sNext, sNext2, sDma, sKA, sKB, sIt, sDmaH, sTmp = range(44, 56)
    e(f"s_lshl_b32 s{sAw}, s33, 13\ns_mov_b32 s{sKA}, 0\ns_mov_b32 s{sKB}, 0\ns_mov_b32 s14, 0x400000\ns_mov_b32 s15, 0x20000\ns_mov_b32 s19, 0x20000")
    e("s_cmp_ge_u32 s31, 16\ns_waitcnt lgkmcnt(0)")
    ts_stamp(k, 2, TS)
    e("s_mov_b32 s12, s4\ns_mov_b32 s13, s5")
    if opt.get("only") == "h": e("s_branch L1_h")
    elif opt.get("only") != "q": e("s_cbranch_scc1 L1_h")

    def body(typ):
        q = typ == "q"
        P = "L1" + typ
        vm = VM()
        rowstride = 6144 if q else 7168
        ASLOT = 32768 + (4096 if q else 0)
        nb = 3 if q else 4
        BG = 12288 if q else 16384
        wpart = BG // 4
        ABASE = 4 * BG
        cpr = 24 if q else 28
        rowb = cpr * 16
        S = []
        if q: S += ["s_mov_b32 s16, s6", "s_mov_b32 s17, s7", "s_mov_b32 s18, 0x600000"]
        else: S += ["s_mov_b32 s16, s8", "s_mov_b32 s17, s9", "s_mov_b32 s18, 0x700000"]
        magic = {24: 2731, 28: 2341}[cpr]
        for qq in range(256): assert (qq * magic) >> 16 == qq // cpr
        S += [f"s_lshl_b32 s40, s33, 3", f"s_mul_i32 s41, s35, {128 if q else 448}", f"s_mov_b32 s42, {rowstride}", f"s_mul_i32 s{sBw}, s33, {wpart}"]
        for i in range(nb):
            t = f"v_add_u32 {T[0]}, {64*i}, {L}\nv_mul_u32_u24 {T[1]}, {magic}, {T[0]}\nv_lshrrev_b32 {T[1]}, 16, {T[1]}\n"
            t += f"v_mul_u32_u24 {T[2]}, {cpr}, {T[1]}\nv_sub_u32 {T[2]}, {T[0]}, {T[2]}\nv_add_u32 {T[1]}, s40, {T[1]}\n"
            if q:
                t += f"v_and_b32 {T[3]}, 2, {T[1]}\nv_lshrrev_b32 {T[4]}, 1, {T[1]}\nv_and_b32 {T[4]}, 4, {T[4]}\nv_or_b32 {T[3]}, {T[3]}, {T[4]}\nv_xor_b32 {T[2]}, {T[2]}, {T[3]}\n"
                t += f"v_lshrrev_b32 {T[3]}, 3, {T[2]}\nv_and_b32 {T[4]}, 7, {T[2]}\nv_lshlrev_b32 {T[3]}, 11, {T[3]}\nv_lshl_add_u32 {T[2]}, {T[4]}, 4, {T[3]}\n"
            else:
                t += f"v_lshrrev_b32 {T[3]}, 2, {T[1]}\nv_and_b32 {T[3]}, 2, {T[3]}\nv_xor_b32 {T[2]}, {T[2]}, {T[3]}\nv_lshlrev_b32 {T[2]}, 4, {T[2]}\n"
            t += f"v_mul_lo_u32 {T[1]}, {T[1]}, s42\ns_sub_u32 s43, s41, {1024*i}\n"
            nvalid = 8 * cpr - 64 * i
            if nvalid < 64:
                t += f"v_add3_u32 {T[1]}, {T[1]}, {T[2]}, s43\nv_mov_b32 {T[2]}, 0x80000000\nv_cmp_gt_u32 vcc, {nvalid}, {L}\nv_cndmask_b32 v{vDB[i]}, {T[2]}, {T[1]}, vcc"
            else:
                t += f"v_add3_u32 v{vDB[i]}, {T[1]}, {T[2]}, s43"
            S += t.split("\n")
        SH = []
        if q:
            t = f"s_lshl_b32 s{sHw}, s33, 10\ns_add_u32 s{sHw}, s{sHw}, 32768\n"
            t += f"v_lshrrev_b32 {T[0]}, 3, {L}\ns_lshl_b32 s40, s33, 2\nv_add_u32 {T[0]}, s40, {T[0]}\n"
            t += f"v_lshrrev_b32 {T[1]}, 1, {T[0]}\nv_and_b32 {T[1]}, 7, {T[1]}\nv_and_b32 {T[2]}, 7, {L}\nv_xor_b32 {T[1]}, {T[1]}, {T[2]}\n"
            t += f"s_lshl_b32 s40, s34, 8\ns_sub_i32 s40, s40, 16\nv_add_u32 {T[0]}, s40, {T[0]}\nv_max_i32 {T[0]}, 0, {T[0]}\n"
            t += f"v_lshlrev_b32 {T[0]}, 11, {T[0]}\nv_lshl_add_u32 {T[0]}, {T[1]}, 4, {T[0]}\n"
            t += f"v_mov_b32 {T[2]}, 0x80000000\nv_cmp_gt_u32 vcc, 32, {L}\nv_cndmask_b32 v{vDH}, {T[2]}, {T[0]}, vcc"
            SH = t.split("\n")
        t = f"v_and_b32 {T[0]}, 15, {L}\nv_lshrrev_b32 {T[1]}, 4, {L}\nv_lshrrev_b32 {T[2]}, 1, {T[0]}\n"
        t += f"v_xor_b32 {T[3]}, {T[1]}, {T[2]}\nv_xor_b32 {T[4]}, 4, {T[3]}\nv_lshlrev_b32 {T[3]}, 4, {T[3]}\nv_lshlrev_b32 {T[4]}, 4, {T[4]}\n"
        t += f"s_lshl_b32 s40, s36, 14\nv_lshl_add_u32 {T[5]}, {T[0]}, 7, s40\n"
        t += f"v_add_u32 v{vAb[0]}, {T[5]}, {T[3]}\nv_add_u32 v{vAb[1]}, {T[5]}, {T[4]}\n"
        t += f"v_add_u32 v{vAc[0]}, {ABASE}, v{vAb[0]}\nv_add_u32 v{vAc[1]}, {ABASE}, v{vAb[1]}\n"
        if q:
            t += f"v_lshrrev_b32 {T[6]}, 2, {T[0]}\nv_lshlrev_b32 {T[6]}, 10, {T[6]}\nv_and_b32 {T[7]}, 3, {T[0]}\nv_lshl_add_u32 {T[6]}, {T[7]}, 7, {T[6]}\n"
            t += f"v_add_u32 {T[6]}, 0x8000, {T[6]}\nv_subrev_u32 {T[5]}, 2048, {T[5]}\ns_cmp_eq_u32 s36, 0\ns_cselect_b64 vcc, -1, 0\n"
            t += f"v_cndmask_b32 {T[5]}, {T[5]}, {T[6]}, vcc\nv_add_u32 v{vHb[0]}, {T[5]}, {T[3]}\nv_add_u32 v{vHb[1]}, {T[5]}, {T[4]}\n"
            t += f"v_add_u32 v{vHc[0]}, {ABASE}, v{vHb[0]}\nv_add_u32 v{vHc[1]}, {ABASE}, v{vHb[1]}\n"
        def rowaddr(kk): return (kk // 8) * wpart + (kk % 8) * rowb
        g_stride = rowaddr(8); second = rowaddr(4)
        t += f"v_lshrrev_b32 {T[0]}, 4, {L}\nv_bfe_u32 {T[1]}, {L}, 2, 2\nv_and_b32 {T[2]}, 3, {L}\n"
        t += f"v_mul_u32_u24 {T[3]}, {g_stride}, {T[0]}\nv_mul_u32_u24 {T[4]}, {rowb}, {T[1]}\nv_add_u32 {T[3]}, {T[3]}, {T[4]}\nv_lshl_add_u32 {T[3]}, {T[2]}, 3, {T[3]}\n"
        if q:
            t += f"v_lshrrev_b32 {T[4]}, 1, {T[1]}\nv_and_b32 {T[5]}, 1, {T[0]}\nv_lshl_or_b32 {T[4]}, {T[5]}, 1, {T[4]}\ns_lshl_b32 s40, s37, 1\n"
            for tt in range(2): t += f"s_add_u32 s41, s40, {tt}\nv_xor_b32 {T[5]}, s41, {T[4]}\nv_lshl_add_u32 v{vB[tt]}, {T[5]}, 5, {T[3]}\n"
        else:
            t += f"v_and_b32 {T[4]}, 1, {T[0]}\ns_lshl_b32 s40, s37, 3\n"
            for tt in range(2): t += f"s_add_u32 s41, s40, {tt}\nv_xor_b32 {T[5]}, s41, {T[4]}\nv_lshl_add_u32 v{vB[tt]}, {T[5]}, 5, {T[3]}\n"
            t += f"s_add_u32 s41, s37, 6\nv_xor_b32 {T[5]}, s41, {T[4]}\nv_lshl_add_u32 v{vB[2]}, {T[5]}, 5, {T[3]}\n"
        t += f"s_mov_b32 s22, 0x10000000\ns_mov_b32 s23, 0x20000\ns_mov_b32 s26, 2048\ns_mov_b32 s27, 0x20000\n"
        t += f"v_lshlrev_b32 {T[8]}, 5, {L}\ns_lshl_b32 s56, s2, 14\ns_lshl_b32 s41, s33, 12\ns_add_u32 s56, s56, s41"
        SR = [x for x in t.split("\n") if x]

        def dA(t, hf, dyn=False):
            G = []
            for i in range(4):
                ii = hf * 4 + i
                if i == 0:
                    pre = [f"s_add_u32 m0, s{sDma}, {hf*4096}"] if dyn else [f"s_add_u32 m0, s{sAw}, {ABASE + (t%3)*ASLOT + hf*4096}", f"s_movk_i32 s{sKA}, {t*128}"]
                else: pre = []
                G.append((pre, [f"buffer_load_dwordx4 v{vDA[ii]}, s[12:15], s{sKA} offen offset:{i*1024} lds"], ("A", t)))
            if q and hf == 1:
                pre = [f"s_mov_b32 m0, s{sDmaH}"] if dyn else [f"s_add_u32 m0, s{sHw}, {ABASE + (t%3)*ASLOT}"]
                G.append((pre, [f"buffer_load_dwordx4 v{vDH}, s[12:15], s{sKA} offen lds"], ("A", t)))
            return G
        def dB(j):
            G = []
            for i in range(nb):
                pre = [f"s_add_u32 m0, s{sBw}, {(j%4)*BG}"] if i == 0 else []
                ld = [f"buffer_load_dwordx4 v{vDB[i]}, s[16:19], s{sKB} offen offset:{i*1024} lds"]
                if i == nb - 1: ld.append(f"s_add_u32 s{sKB}, s{sKB}, {32*rowstride}")
                G.append((pre, ld, ("B", j)))
            return G
        def gate_loads():
            G = [([], [f"buffer_load_dwordx4 a[{AG}:{AG+3}], {T[8]}, s[24:27], 0 offen"], "G"), ([], [f"buffer_load_dwordx4 a[{AG+4}:{AG+7}], {T[8]}, s[24:27], 0 offen offset:16"], "G")]
            for r in range(2):
                for hh in range(2):
                    G.append(([], [f"buffer_load_dwordx4 a[{AG+8+8*r+4*hh}:{AG+11+8*r+4*hh}], {T[8]}, s[12:15], s56 offen offset:{r*2048+16*hh}"], "G"))
            return G
        def emit_mixed(G, fill):
            n = len(G); per = -(-len(fill) // n) if fill else 0
            for i, (pre, ld, tag) in enumerate(G):
                e(pre); e(fill[i * per:(i + 1) * per][:1]); e(ld); e(fill[i * per:(i + 1) * per][1:]); vm.issue(tag)
        nA = MT + (1 if q else 0); nBf = 6 if q else 7
        def fA(s, i): return s * FR + 4 * i
        def fB(s, j): return s * FR + 4 * nA + 4 * j
        def readsA(s, ks):
            Ar = [f"ds_read_b128 a[{fA(s,i)}:{fA(s,i)+3}], v{vAc[ks]} offset:{i*2048}" for i in range(MT)]
            if q: Ar.insert(0, f"ds_read_b128 a[{fA(s,MT)}:{fA(s,MT)+3}], v{vHc[ks]}")
            return Ar
        def readsB(s, slot):
            Br = []
            for j in range(nBf):
                if q: v, off = vB[j & 1], (j >> 1) * 128
                else: v, off = (vB[j & 1], (j >> 1) * 64) if j < 6 else (vB[2], 0)
                off += slot * BG
                Br.append(f"ds_read_b64_tr_b16 a[{fB(s,j)}:{fB(s,j)+1}], v{v} offset:{off}")
                Br.append(f"ds_read_b64_tr_b16 a[{fB(s,j)+2}:{fB(s,j)+3}], v{v} offset:{off+second}")
            return Br
        def reads(s, ks, slot):
            Ar, Br, R = readsA(s, ks), readsB(s, slot), []
            while Ar or Br:
                if Br: R.append(Br.pop(0))
                if Br: R.append(Br.pop(0))
                if Ar: R.append(Ar.pop(0))
            return R
        accQ = lambda mt, t: (mt * 2 + t) * 4
        accK = lambda m1, t: MT * 8 + (m1 * 2 + t) * 4
        accV = lambda m1, t: MT * 8 + (MT + 1) * 8 + (t * (MT + 1) + m1) * 4
        accH = lambda mt, j: (mt * 7 + j) * 4
        def mrow(s, r, zero=False):
            M = []
            def mm(d, a, b): M.append(f"v_mfma_f32_16x16x32_bf16 v[{d}:{d+3}], a[{a}:{a+3}], a[{b}:{b+3}], " + ("0" if zero else f"v[{d}:{d+3}]"))
            if q:
                x = fA(s, r - 1) if r else fA(s, MT)
                for t in range(2): mm(accK(r, t), fB(s, 2 + t), x)
                for t in range(2):
                    if r: mm(accQ(r - 1, t), fB(s, t), x)
                for t in range(2): mm(accV(r, t), x, fB(s, 4 + t))
            else:
                for j in range(7): mm(accH(r, j), fB(s, j), fA(s, r))
            return M
        def mfmas(s, zero=False): return [m for r in range(nA) for m in mrow(s, r, zero)]
        def emit_sub(M, *slots):
            for i, m in enumerate(M):
                if not opt.get("nomfma"): e(m)
                for sl in slots:
                    for x in sl[i]:
                        if opt.get("nods") and x.startswith("ds_"): continue
                        if opt.get("nodma") and x.startswith("buffer_load") and "lds" in x: continue
                        e(x)
        def needs(j): return {("B", j + 1), ("A", (j + 1) >> 1)}
        def rot():
            pre = []
            for ks in range(2):
                pre.append(f"v_add_u32 v{vAc[ks]}, s{sNext}, v{vAb[ks]}")
                if q: pre.append(f"v_add_u32 v{vHc[ks]}, s{sNext}, v{vHb[ks]}")
            pre += [f"s_add_u32 s{sDma}, s{sCur}, s{sAw}"] + ([f"s_add_u32 s{sDmaH}, s{sCur}, s{sHw}"] if q else [])
            pre += [f"s_add_u32 s{sKA}, s{sKA}, 128", f"s_cmp_lt_u32 s{sKA}, 2048", "s_cselect_b32 s14, 0x400000, 0",
                    f"s_mov_b32 s{sTmp}, s{sCur}", f"s_mov_b32 s{sCur}, s{sNext}", f"s_mov_b32 s{sNext}, s{sNext2}", f"s_mov_b32 s{sNext2}, s{sTmp}"]
            return pre
        def substep(j, D, wait, extra=None, zero=False, R=None, rotate=None, emit=True, r1=None, pre_extra=None):
            if emit:
                e(f"s_waitcnt lgkmcnt(0)\ns_waitcnt vmcnt({wait})\ns_barrier")
                M = mfmas(j & 1, zero); n = len(M)
                pre = (rot() if rotate is None else rotate) if (j & 1) else []
                pre = pre + (pre_extra or [])
                s0 = [[] for _ in range(n)]
                for i, p in enumerate(pre): s0[i // 3].append(p)
                if R is None: R = reads((j + 1) & 1, (j + 1) & 1, (j + 1) % 4)
                rr1 = r1 or opt.get("r1", (n * 3) // 4)
                sr = place(n, R[:2], 0, 1); sr2 = place(n, R[2:], 2, rr1)
                sd = place(n, [(p, l) for p, l, t in D], opt.get("d0", 5), opt.get("d1", n - 3)) if D else [[] for _ in range(n)]
                sx = place(n, extra, 4, n - 1) if extra else [[] for _ in range(n)]
                emit_sub(M, s0, sr, sr2, sd, sx)
            for p, l, t in D: vm.issue(t)

        emit_mixed(dA(0, 0) + dA(0, 1)[:4], SH + S)
        if q: emit_mixed(dA(0, 1)[4:], [])
        emit_mixed(dB(0), SR[:len(SR) // 2])
        ts_stamp(k, 3, TS)
        emit_mixed(dB(1), SR[len(SR) // 2:])
        sched = opt.get("sched", 0)
        if sched == 0:
            pro = gate_loads() + dA(1, 0) + dA(1, 1) + dB(2)
            Dj = [dB(3) + dA(2, 0), dB(4) + dA(2, 1) + dB(5), dA(3, 0) + dB(6) + dA(3, 1), dA(4, 0) + dB(7)]
        elif sched == 1:
            pro = dA(1, 0) + dA(1, 1) + gate_loads()
            Dj = [dB(2) + dB(3) + dA(2, 0), dB(4) + dA(2, 1) + dB(5), dA(3, 0) + dB(6) + dA(3, 1), dA(4, 0) + dB(7)]
        else:
            pro = dA(1, 0) + dA(1, 1) + dB(2) + gate_loads() + dA(2, 0) + dB(3)
            Dj = [dA(2, 1) + dB(4), dA(3, 0) + dB(5), dA(3, 1) + dB(6), dA(4, 0) + dB(7)]
        emit_mixed(pro, [])
        ts_stamp(k, 4, TS)
        ts_stamp(k, 5, TS)
        e(f"s_waitcnt vmcnt({vm.count({('A', 0), ('B', 0)})})\ns_barrier")
        ts_stamp(k, 6, TS)
        e(reads(0, 0, 0))
        z = [T[10], T[11]]
        GC = [["s_mov_b32 s40, 0xffff0000", "s_mov_b32 s41, 0x3f803f80", f"v_mov_b32 {z[0]}, 0", f"v_mov_b32 {z[1]}, 0"]]
        for qq in range(8):
            g = [f"v_accvgpr_read_b32 {T[0]}, a{AG+qq}", f"v_accvgpr_read_b32 {T[2]}, a{AG+8+qq}", f"v_accvgpr_read_b32 {T[4]}, a{AG+16+qq}",
                 f"v_and_b32 {T[1]}, s40, {T[0]}", f"v_lshlrev_b32 {T[0]}, 16, {T[0]}",
                 f"v_and_b32 {T[3]}, s40, {T[2]}", f"v_lshlrev_b32 {T[2]}, 16, {T[2]}",
                 f"v_and_b32 {T[5]}, s40, {T[4]}", f"v_lshlrev_b32 {T[4]}, 16, {T[4]}",
                 f"v_mul_f32 {T[2]}, {T[2]}, {T[0]}", f"v_mul_f32 {T[3]}, {T[3]}, {T[1]}", f"v_mul_f32 {T[4]}, {T[4]}, {T[0]}", f"v_mul_f32 {T[5]}, {T[5]}, {T[1]}",
                 f"v_cvt_pk_bf16_f32 {T[6]}, {T[2]}, {T[3]}", f"v_cvt_pk_bf16_f32 {T[7]}, {T[4]}, {T[5]}",
                 f"v_dot2_f32_bf16 {z[0]}, {T[6]}, s41, {z[0]}", f"v_dot2_f32_bf16 {z[1]}, {T[7]}, s41, {z[1]}"]
            GC += [[x] for x in g]
        GR = []
        for sh in (8, 4, 2, 1):
            for r in range(2): GR.append(f"v_add_f32_dpp {z[r]}, {z[r]}, {z[r]} row_ror:{sh} row_mask:0xf bank_mask:0xf")
        for sw in ("v_permlane16_swap_b32", "v_permlane32_swap_b32"):
            for r in range(2): GR.append(f"v_mov_b32 {T[r]}, {z[r]}")
            for r in range(2): GR.append(f"{sw} {z[r]}, {T[r]}")
            for r in range(2): GR.append(f"v_add_f32 {z[r]}, {z[r]}, {T[r]}")
        for f in ("v_cvt_pk_bf16_f32 {z}, {z}, {z}", "v_and_b32 {z}, s40, {z}", "v_mul_f32 {z}, 0xbfb8aa3b, {z}", "v_exp_f32 {z}, {z}", "v_add_f32 {z}, 1.0, {z}", "v_rcp_f32 {z}, {z}",
                  "v_cvt_pk_bf16_f32 {z}, {z}, {z}", "v_and_b32 {a}, s40, {z}", "v_sub_f32 {z}, 1.0, {a}", "v_cvt_pk_bf16_f32 {z}, {z}, {z}", "v_and_b32 {b}, s40, {z}"):
            for r in range(2): GR.append(f.format(z=z[r], a=T[2 * r], b=T[2 * r + 1]))
        GR += [f"s_lshl_b32 s40, s2, 6", f"s_lshl_b32 s41, s33, 4", "s_add_u32 s40, s40, s41", f"s_add_u32 s40, s40, {WS_GATE}",
               f"s_lshl_b32 s41, s2, 8", f"s_add_u32 s41, s41, {WS_FLAG}",
               f"v_mov_b32 {T[5]}, 0", f"v_lshlrev_b32 {T[4]}, 30, {L}"]
        GR = [[x] for x in GR]
        GS = [([], [f"buffer_store_dwordx4 v[{vT[0]}:{vT[3]}], {T[4]}, s[20:23], s40 offen"], "GS"), ([], [f"buffer_store_dword {T[5]}, {T[4]}, s[20:23], s41 offen"], "GS")]
        def srot(t):
            return [f"v_add_u32 v{v[0]}, {ABASE + (t%3)*ASLOT}, v{v[1]}" for v in list(zip(vAc, vAb)) + (list(zip(vHc, vHb)) if q else [])]
        substep(0, Dj[0], vm.count(needs(0)), zero=True)
        substep(1, Dj[1], vm.count(needs(1) | {"G"}), rotate=srot(1), extra=GC[:70])
        substep(2, Dj[2], vm.count(needs(2)), extra=GC[70:])
        init = [f"s_mov_b32 s{sCur}, {ABASE+2*ASLOT}", f"s_mov_b32 s{sNext}, {ABASE}", f"s_mov_b32 s{sNext2}, {ABASE+ASLOT}",
                f"s_add_u32 s{sDma}, s{sAw}, {ABASE+ASLOT}", f"s_mov_b32 s{sIt}, 6"] + ([f"s_add_u32 s{sDmaH}, s{sHw}, {ABASE+ASLOT}"] if q else [])
        substep(3, Dj[3], vm.count(needs(3)), rotate=srot(2) + init, extra=GR + [[g[1][0] for g in GS]])
        for g in GS: vm.issue(g[2])
        def Dsteady(j): return dB(j + 4) + (dA((j >> 1) + 3, 0, True) if j & 1 else dA((j >> 1) + 2, 1, True))
        save = list(vm.q); W = [99] * 4
        for j in range(4, 28):
            W[j % 4] = min(W[j % 4], vm.count(needs(j)))
            for p, l, t in Dsteady(j): vm.issue(t)
        after = list(vm.q); vm.q = save
        e(".p2align 6")
        k.label(P + "_loop")
        for u in range(4):
            substep(4 + u, Dsteady(4 + u), W[u], pre_extra=[f"s_sub_u32 s{sIt}, s{sIt}, 1"] if u == 2 else None)
        e(f"s_cmp_lg_u32 s{sIt}, 0\ns_cbranch_scc1 {P}_loop")
        vm.q = after
        PFS = [f"s_mov_b32 s74, 0x200000", "s_mov_b32 s75, 0x20000", "s_mov_b32 s76, s10", "s_mov_b32 s77, s11", "s_mov_b32 s78, 0x700000", "s_mov_b32 s79, 0x20000",
               "s_lshl_b32 s40, s2, 2", "s_add_u32 s40, s40, s33", "s_lshl_b32 s41, s40, 11", "s_mul_i32 s42, s40, 7168", "s_add_u32 s43, s42, 4096",
               f"v_lshlrev_b32 {T[0]}, 6, {L}", f"v_mov_b32 {T[3]}, 0x80000000", f"v_cmp_gt_u32 vcc, 32, {L}", f"v_cndmask_b32 {T[1]}, {T[3]}, {T[0]}, vcc",
               f"v_cmp_gt_u32 vcc, 48, {L}", f"v_cndmask_b32 {T[2]}, {T[3]}, {T[0]}, vcc"]
        PFL = [([], [f"buffer_load_dword a{AG}, {T[1]}, s[72:75], s41 offen"], "PF"), ([], [f"buffer_load_dword a{AG+1}, {T[0]}, s[76:79], s42 offen"], "PF"),
               ([], [f"buffer_load_dword a{AG+2}, {T[2]}, s[76:79], s43 offen"], "PF")]
        if not opt.get("pf", True): PFL = []
        substep(28, [], vm.count(needs(28)), pre_extra=PFS)
        n = len(mfmas(0))
        R29 = reads(0, 0, 2) + readsB(2, 3) + readsA(2, 1)
        substep(29, PFL, vm.count(needs(29) | {("B", 31)}), R=R29, r1=n - 4, rotate=rot()[:4 if q else 2])
        st = opt.get("st", "")
        ES = [f"v_lshlrev_b32 {T[0]}, 4, {L}", "s_lshl_b32 s40, s34, 1", "s_add_u32 s40, s40, s36", f"s_mul_i32 s40, s40, {144*8192}"]
        def pack8(a, b): return [f"v_cvt_pk_bf16_f32 v{a}, v{a}, v{a+1}", f"v_cvt_pk_bf16_f32 v{a+1}, v{a+2}, v{a+3}", f"v_cvt_pk_bf16_f32 v{a+2}, v{b}, v{b+1}", f"v_cvt_pk_bf16_f32 v{a+3}, v{b+2}, v{b+3}"]
        if not q:
            ES += [f"s_mul_i32 s41, s35, {7*8192}", "s_add_u32 s40, s40, s41", f"s_add_u32 s40, s40, {32*8192}",
                   f"s_add_u32 s59, s40, {3*8192}", "s_lshl_b32 s41, s37, 3", "s_add_u32 s59, s59, s41",
                   "s_lshl_b32 s41, s37, 15", "s_add_u32 s56, s40, s41", "s_add_u32 s57, s56, 8192", "s_add_u32 s58, s56, 16384"]
            def epi(mt):
                o = []
                for pr in range(3):
                    a = accH(mt, 2 * pr); b = accH(mt, 2 * pr + 1)
                    o += pack8(a, b) + [f"v_pk_max_i16 v{a+r}, v{a+r}, 0" for r in range(4)]
                    o.append(f"buffer_store_dwordx4 v[{a}:{a+3}], {T[0]}, s[20:23], s{56+pr} offen offset:{(mt%4)*1024} {st}")
                a = accH(mt, 6)
                o += pack8(a, a)[:2] + [f"v_pk_max_i16 v{a+r}, v{a+r}, 0" for r in range(2)]
                o.append(f"buffer_store_dwordx2 v[{a}:{a+1}], {T[0]}, s[20:23], s59 offen offset:{(mt%4)*1024} {st}")
                if mt == 3: o += [f"s_add_u32 s{56+i}, s{56+i}, 4096" for i in range(4)]
                return o
        else:
            sel = [vDA[0], vDA[1], vDA[2], vDA[3]]
            i_, g_, z_ = T[1], T[2], T[5]
            t = f"s_lshl_b32 s41, s35, 1\ns_add_u32 s41, s41, s37\ns_lshl_b32 s41, s41, 13\ns_add_u32 s40, s40, s41\n"
            t += f"v_and_b32 {i_}, 15, {L}\nv_lshrrev_b32 {g_}, 4, {L}\nv_and_b32 {T[3]}, 1, {i_}\nv_cmp_eq_u32 s[56:57], 1, {T[3]}\n"
            t += f"v_lshl_add_u32 {T[4]}, {g_}, 2, {T[3]}\nv_cmp_le_u32 s[58:59], {T[4]}, {i_}\nv_add_u32 {T[4]}, 2, {T[4]}\nv_cmp_le_u32 s[60:61], {T[4]}, {i_}\n"
            t += "s_or_b32 s41, s34, s36\ns_cmp_eq_u32 s41, 0\ns_cselect_b64 s[62:63], -1, 0\n"
            t += f"v_mov_b32 {z_}, 0x0c0c0c0c\nv_mov_b32 {T[3]}, 0x0c0c0100\nv_mov_b32 {T[4]}, 0x01000c0c\nv_cndmask_b32 {T[6]}, {T[3]}, {T[4]}, s[56:57]\n"
            t += "s_andn2_b64 s[64:65], s[62:63], s[58:59]\ns_andn2_b64 s[66:67], s[62:63], s[60:61]\n"
            t += f"v_cndmask_b32 v{sel[0]}, {T[6]}, {z_}, s[58:59]\nv_cndmask_b32 v{sel[2]}, {z_}, {T[6]}, s[58:59]\n"
            t += f"v_mov_b32 {T[3]}, 0x0c0c0302\nv_mov_b32 {T[4]}, 0x03020c0c\nv_cndmask_b32 {T[6]}, {T[3]}, {T[4]}, s[56:57]\n"
            t += f"v_cndmask_b32 v{sel[1]}, {T[6]}, {z_}, s[60:61]\nv_cndmask_b32 v{sel[3]}, {z_}, {T[6]}, s[60:61]\n"
            t += f"s_mov_b32 s68, 0xffff0000\ns_mov_b32 s69, {SCALE}\ns_mov_b32 s70, {LOG2E}\nv_mov_b32 {z_}, {NEG}"
            ES += t.split("\n")
            Vh = lambda m1, t: accV(0, t) + 2 * m1
            def mf0(d, a, b): return f"v_mfma_f32_16x16x32_bf16 v[{d}:{d+3}], v[{a}:{a+3}], v[{b}:{b+3}], 0"
            def stage_a(m1):
                o = pack8(accK(m1, 0), accK(m1, 1))
                if m1: o += pack8(accQ(m1 - 1, 0), accQ(m1 - 1, 1))
                for t in range(2):
                    a = accV(m1, t); d = Vh(m1, t)
                    o += [f"v_cvt_pk_bf16_f32 v{d}, v{a}, v{a+1}", f"v_cvt_pk_bf16_f32 v{d+1}, v{a+2}, v{a+3}"]
                if m1:
                    mt = m1 - 1
                    o += [mf0(accQ(mt, 1), accK(mt, 0), accQ(mt, 0)), mf0(accK(m1, 1), accK(m1, 0), accQ(mt, 0))]
                return o
            def stage_b(mt):
                p, c = accQ(mt, 1), accK(mt + 1, 1)
                o = [f"v_cndmask_b32 v{p}, v{p}, v{p+1}, s[56:57]", f"v_cndmask_b32 v{p+1}, v{p+2}, v{p+3}, s[56:57]",
                     f"v_cndmask_b32 v{c}, v{c}, v{c+1}, s[56:57]", f"v_cndmask_b32 v{c+1}, v{c+2}, v{c+3}, s[56:57]",
                     f"v_cndmask_b32 v{p}, v{p}, v{c}, s[58:59]", f"v_cndmask_b32 v{p+1}, v{p+1}, v{c+1}, s[60:61]",
                     f"v_cvt_pk_bf16_f32 v{c}, v{p}, v{p+1}", f"v_lshlrev_b32 v{p}, 16, v{c}", f"v_and_b32 v{p+1}, s68, v{c}",
                     f"v_mul_f32 v{p}, s69, v{p}", f"v_mul_f32 v{p+1}, s69, v{p+1}",
                     f"v_cvt_pk_bf16_f32 v{c}, v{p}, v{p+1}", f"v_lshlrev_b32 v{p}, 16, v{c}", f"v_and_b32 v{p+1}, s68, v{c}"]
                if mt == 0: o += [f"v_cndmask_b32 v{p}, v{p}, {z_}, s[64:65]", f"v_cndmask_b32 v{p+1}, v{p+1}, {z_}, s[66:67]"]
                o += [f"v_max_f32 v{c}, v{p}, v{p+1}"]
                for sw in ("v_permlane16_swap_b32", "v_permlane32_swap_b32"):
                    o += [f"v_mov_b32 v{c+1}, v{c}", f"{sw} v{c}, v{c+1}", f"v_max_f32 v{c}, v{c}, v{c+1}"]
                o += [f"v_sub_f32 v{p}, v{p}, v{c}", f"v_sub_f32 v{p+1}, v{p+1}, v{c}", f"v_mul_f32 v{p}, s70, v{p}", f"v_mul_f32 v{p+1}, s70, v{p+1}",
                      f"v_exp_f32 v{p}, v{p}", f"v_exp_f32 v{p+1}, v{p+1}", f"v_add_f32 v{c}, v{p}, v{p+1}"]
                for sw in ("v_permlane16_swap_b32", "v_permlane32_swap_b32"):
                    o += [f"v_mov_b32 v{c+1}, v{c}", f"{sw} v{c}, v{c+1}", f"v_add_f32 v{c}, v{c}, v{c+1}"]
                o += [f"v_rcp_f32 v{c}, v{c}", f"v_mul_f32 v{p}, v{p}, v{c}", f"v_mul_f32 v{p+1}, v{p+1}, v{c}", f"v_cvt_pk_bf16_f32 v{c}, v{p}, v{p+1}"]
                o += [f"v_perm_b32 v{p+r}, v{c}, v{c}, v{sel[r]}" for r in range(4)]
                o += [mf0(accQ(mt, 0), Vh(mt, 0), p), mf0(c, Vh(mt, 1), p)]
                return o
            def stage_c(mt):
                a = accQ(mt, 0)
                o = pack8(a, accK(mt + 1, 1)) + [f"buffer_store_dwordx4 v[{a}:{a+3}], {T[0]}, s[20:23], s40 offen offset:{(mt%4)*1024} {st}"]
                if mt == 3: o.append("s_add_u32 s40, s40, 4096")
                return o
            def zipl(*ls):
                o = []; ls = [list(l) for l in ls]
                tot = max(len(l) for l in ls)
                for i in range(tot):
                    for l in ls:
                        a = (i * len(l)) // tot; b = ((i + 1) * len(l)) // tot
                        o += l[a:b]
                return o
            def epi(m1):
                parts = []
                if m1 <= MT: parts.append(stage_a(m1))
                if 0 <= m1 - 2 < MT: parts.append(stage_b(m1 - 2))
                if 0 <= m1 - 3 < MT: parts.append(stage_c(m1 - 3))
                return zipl(*parts) if parts else []
        e("s_waitcnt lgkmcnt(0)")
        ts_stamp(k, 7, TS)
        for r in range(nA):
            M = mrow(0, r) + mrow(2, r)
            X = ES if r == 0 else epi(r - 1)
            emit_sub(M, place(len(M), X, 1, len(M) - 1))
        for r in range(nA - 1, nA + (2 if q else 0)): e(epi(r)) if not q else e(epi(r))
        if q: e(epi(nA + 2))
        ts_stamp(k, 8, TS)
        if TS: e("s_waitcnt vmcnt(0)")
        ts_stamp(k, 9, TS); ts_real(k, 10, TS)
        ts_store(k, 11, TS, 20, 33)
    if opt.get("only") != "h": body("q")
    e("s_endpgm")
    k.label("L1_h")
    body("h")
    k.label("L1_end")
    return k

if __name__ == "__main__":
    from gen2 import gen_stage2
    write_file("v2.s", [gen_stage1(), gen_stage2()])
    for sc in (0, 1, 2):
        write_file(f"v2_s{sc}.s", [gen_stage1(dict(ts=1, sched=sc)), gen_stage2(dict(ts=1))])
```
